```python
import torch

def _softmax(x, axis=-1):
    return torch.softmax(x, dim=axis)
def _gelu(x):
    return torch.nn.functional.gelu(x, approximate="tanh")
def _silu(x):
    return torch.nn.functional.silu(x)
def _sigmoid(x):
    return torch.sigmoid(x)
def _layernorm(x, axis=-1, eps=1e-5):
    m = x.mean(dim=axis, keepdim=True)
    v = x.var(dim=axis, keepdim=True, unbiased=False)
    return (x - m) / torch.sqrt(v + eps)
def _scatter_add(tgt, idx, src, axis=0):
    return tgt.clone().index_add_(axis, idx, src)
def _segment_sum(src, seg, n):
    out = torch.zeros((n,) + src.shape[1:], dtype=src.dtype)
    return out.index_add_(0, seg, src)
def _pad(x, pw):
    flat = tuple(v for pair in reversed(pw) for v in pair)
    return torch.nn.functional.pad(x, flat)

kernel_name = 'recurrent_scan__ssm_conv_s5__swiglu_ffn__prompt'

def setup_inputs():

    _w = (lambda a: (lambda t: t.to(torch.bfloat16) if t.is_floating_point() else t)(torch.as_tensor(a)))
    def _A_setup():
        B, S, D = 1, 2048, 512
        P = D
        Lambda_re = -0.5 * (lambda _x: torch.exp(torch.as_tensor(_x)))((lambda *s: torch.randn(*s, dtype=torch.bfloat16) * 0.2)(P))
        Lambda_im = (lambda *s: torch.randn(*s, dtype=torch.bfloat16) * 0.4)(P) * 1.0
        B_re = (lambda *s: torch.randn(*s, dtype=torch.bfloat16) * 0.2)(P, D) * (D ** -0.5)
        B_im = (lambda *s: torch.randn(*s, dtype=torch.bfloat16) * 0.2)(P, D) * (D ** -0.5)
        C_re = (lambda *s: torch.randn(*s, dtype=torch.bfloat16) * 0.2)(D, P) * (P ** -0.5)
        C_im = (lambda *s: torch.randn(*s, dtype=torch.bfloat16) * 0.2)(D, P) * (P ** -0.5)
        log_dt = (lambda *s: torch.randn(*s, dtype=torch.bfloat16) * 0.2)(P) * 0.3 - 2.0
        Dskip = (lambda *s: torch.randn(*s, dtype=torch.bfloat16) * 0.05)(D)
        return {
            "x": _w((lambda *s: torch.randn(*s, dtype=torch.bfloat16) * 0.05)(B, S, D)),
            "Lambda_re": _w(Lambda_re),
            "Lambda_im": _w(Lambda_im),
            "B_re": _w(B_re),
            "B_im": _w(B_im),
            "C_re": _w(C_re),
            "C_im": _w(C_im),
            "log_dt": _w(log_dt),
            "Dskip": _w(Dskip),
        }
    _A_in = _A_setup()

    def _B_setup():
        B, S, D, F = 1, 2048, 512, 1792
        return {
            "x": _w((lambda *s: torch.randn(*s, dtype=torch.bfloat16) * 0.05)(B, S, D)),
            "w_gate": _w((lambda *s: torch.randn(*s, dtype=torch.bfloat16) * 0.05)(D, F)),
            "w_up": _w((lambda *s: torch.randn(*s, dtype=torch.bfloat16) * 0.05)(D, F)),
            "w_down": _w((lambda *s: torch.randn(*s, dtype=torch.bfloat16) * 0.05)(F, D)),
        }
    _B_in = _B_setup()

    return {
        "A_x": _A_in["x"],
        "A_Lambda_re": _A_in["Lambda_re"],
        "A_Lambda_im": _A_in["Lambda_im"],
        "A_B_re": _A_in["B_re"],
        "A_B_im": _A_in["B_im"],
        "A_C_re": _A_in["C_re"],
        "A_C_im": _A_in["C_im"],
        "A_log_dt": _A_in["log_dt"],
        "A_Dskip": _A_in["Dskip"],
        "B_x": _B_in["x"],
        "B_w_gate": _B_in["w_gate"],
        "B_w_up": _B_in["w_up"],
        "B_w_down": _B_in["w_down"],
    }

def reference(A_x, A_Lambda_re, A_Lambda_im, A_B_re, A_B_im, A_C_re, A_C_im, A_log_dt, A_Dskip, B_x, B_w_gate, B_w_up, B_w_down):
    def _A_ref(x, Lambda_re, Lambda_im, B_re, B_im, C_re, C_im, log_dt, Dskip):
        Bsz, L, H = x.shape
        Lam = Lambda_re + 1j * Lambda_im
        Bmat = B_re + 1j * B_im
        Cmat = C_re + 1j * C_im
        dt = torch.exp(log_dt)
        Lam_bar = torch.exp(dt * Lam)
        B_bar = ((Lam_bar - 1.0) / Lam)[:, None] * Bmat
        Bu = torch.einsum("bld,pd->blp", x + 0j, B_bar)
        h = torch.zeros_like(Bu[:, 0, :])
        hs = []
        for t in range(L):
            h = Lam_bar[None, :] * h + Bu[:, t, :]
            hs.append(h)
        hseq = torch.stack(hs, 1)
        y = 2.0 * torch.einsum("blp,dp->bld", hseq, Cmat).real + x * Dskip[None, None, :]
        return y

    def _B_ref(x, w_gate, w_up, w_down):
        g = _silu(x @ w_gate)
        u = x @ w_up
        return (g * u) @ w_down

    x = A_x
    xn = _layernorm(x, axis=-1)
    s = _A_ref(xn, A_Lambda_re, A_Lambda_im, A_B_re, A_B_im, A_C_re, A_C_im, A_log_dt, A_Dskip)
    g = _silu(_B_ref(xn, B_w_gate, B_w_up, B_w_down))
    return x + s * g
```

```python
from collections import deque
from kf import Prog

WS_EPOCH = 0
WS_EG = 0x1000
WS_STATS = 0x40000
WS_HF = 0x100000
WS_AF = 0x500000
WS_PROF = 0xD00000
WS_SIZE = 0x1000000

SLOT = 28928
NSLOT = 5
CSB = NSLOT * SLOT
SEG = CSB + 4608
LB = SEG + 2048
RSB = LB + 2048
DUMMY = RSB + 512
LDS_K1 = 163840
HT = 1 * SLOT
UPOFF = 14464

LOG2E = 1.4426950408889634
INV2PI = 0.15915494309189535


def f2h(x):
    import struct
    return '0x%08x' % struct.unpack('<I', struct.pack('<f', x))[0]


S_X, S_B, S_W, S_WS = 8, 12, 16, 20
sW_, sC, sJ, sROT = 32, 33, 34, 35
sXO, sBO, sWO = 36, 37, 38
sMX, sMB, sMW = 39, 40, 41
sSX, sSB, sSW = 42, 43, 44
sT0, sT1, sT2, sT3 = 45, 46, 47, 48
sEP = 50
sNEED0, sNEED1 = 84, 86
sM0, sM1 = 88, 90
sAFO, sHFO = 92, 93
sSTAMP = 94
sPS = 96
P_X, P_LRE, P_LIM, P_BRE, P_BIM, P_CRE, P_CIM, P_LDT = 52, 54, 56, 58, 60, 62, 64, 66
P_DSK, P_BX, P_WG, P_WU, P_WD, P_OUT, P_DBG, P_WS = 68, 70, 72, 74, 76, 78, 80, 82

vL = 1
vW = [2, 3, 4, 5]
vWD = [6, 7, 8, 9, 10, 11, 12]
vRHO = 13
vSG = 14
vL16 = 15
RING = 16
vAR, vAI, vZR, vZI = 40, 41, 42, 43
vCR, vCI, vA16R, vA16I = 44, 45, 46, 47
vPWR, vPWI = 48, 49
vP0R, vP0I, vP1R, vP1I = 50, 51, 52, 53
vC1, vKQ = 54, 55
vM, vRS = 56, 57
vCSW = 58
vCSR = 59
MF = 60
CF = 64
vSEGW, vSEGR = 68, 69
vEOFF, vLOFF0, vLOFF1 = 70, 71, 72
vHTW, vHTR = 73, 74
vSTO = 75
vRSW, vRSR = 76, 77
vEPL = 78
T = 80
SR, SI = 112, 128
FA = 144
BF = 144
vX = [160, 161, 162, 163]
vB = [164, 165, 166, 167]
vXD = [168, 169, 170, 171]
vBD = [172, 173]
vPT = 176

AX = 0
ACS = 128
ACSB = 156
AS0, AS1, AQ0, AQ1 = 164, 168, 172, 176
ASEL = 180
AONE = 184


def v(n, k=1):
    return f'v{n}' if k == 1 else f'v[{n}:{n + k - 1}]'


def a(n, k=1):
    return f'a{n}' if k == 1 else f'a[{n}:{n + k - 1}]'


def s(n, k=1):
    return f's{n}' if k == 1 else f's[{n}:{n + k - 1}]'


class Side:
    def __init__(self, p):
        self.p = p
        self.q = deque()
        self.events = set()

    def add(self, text, after=None, tag=None):
        for line in text.split('\n'):
            line = line.strip()
            if line:
                self.q.append(('i', line, after, tag))

    def mark(self, name):
        self.q.append(('m', name, None, None))

    def call(self, fn, after=None):
        self.q.append(('c', fn, after, None))

    def event(self, name):
        self.events.add(name)

    def pop(self, n):
        while self.q:
            kind, x, after, tag = self.q[0]
            if kind == 'm':
                self.q.popleft(); self.events.add(x); continue
            if n <= 0:
                return
            if after is not None and after not in self.events:
                return
            self.q.popleft()
            if kind == 'c':
                x()
            else:
                self.p.I(x, tag=tag)
            n -= 1

    def flush_until(self, name):
        while name not in self.events:
            assert self.q, f'marker {name} never reached'
            kind, x, after, tag = self.q[0]
            assert kind == 'm' or after is None or after in self.events, f'flush_until({name}) blocked by {after}'
            self.pop(1)

    def flush(self):
        while self.q:
            kind, x, after, tag = self.q[0]
            assert kind == 'm' or after is None or after in self.events, f'flush blocked by {after}'
            self.pop(1)


def cexp(p, dr, di, nf, t):
    p(f'v_mul_f32 {v(t)}, {v(nf)}, {v(vZR)}')
    p(f'v_mul_f32 {v(t + 1)}, {v(nf)}, {v(vZI)}')
    p(f'v_exp_f32 {v(t)}, {v(t)}')
    p(f'v_fract_f32 {v(t + 1)}, {v(t + 1)}')
    p(f'v_cos_f32 {v(dr)}, {v(t + 1)}')
    p(f'v_sin_f32 {v(di)}, {v(t + 1)}')
    p(f'v_mul_f32 {v(dr)}, {v(dr)}, {v(t)}')
    p(f'v_mul_f32 {v(di)}, {v(di)}, {v(t)}')


def bf16_round(p, dst, src):
    p(f'v_cvt_pk_bf16_f32 {v(dst)}, {v(src)}, {v(src)}')
    p(f'v_lshlrev_b32 {v(dst)}, 16, {v(dst)}')


def build(prof=False, opts=None):
    opts = opts or {}
    p = Prog()
    sd = Side(p)
    nstamp = [0]

    def stamp():
        if not prof:
            return
        k = nstamp[0]; nstamp[0] += 1
        p(f's_memtime {s(sSTAMP, 2)}')
        p.wait_lgkm_all()
        p(f'v_mov_b32 {v(111)}, {s(sSTAMP)}')
        p(f's_add_u32 {s(sT3)}, {s(sPS)}, {4 * k}')
        p(f'v_mov_b32 {v(110)}, {s(sT3)}')
        p(f'buffer_store_dword {v(111)}, {v(110)}, {s(S_WS, 4)}, 0 offen')

    p('s_cmp_ge_u32 s2, 0x100')
    p('s_cbranch_scc1 K1_DONE')
    p(f's_load_dwordx16 {s(52, 16)}, s[0:1], 0')
    p(f's_load_dwordx16 {s(68, 16)}, s[0:1], 64')
    p(f'v_and_b32 {v(vL)}, 63, v0')
    p(f'v_lshrrev_b32 v2, 6, v0')
    p(f'v_readfirstlane_b32 {s(sW_)}, v2')
    p(f's_and_b32 {s(sT0)}, s2, 7')
    p(f's_lshr_b32 {s(sT1)}, s2, 3')
    p(f's_and_b32 {s(sT2)}, {s(sT0)}, 1')
    p(f's_lshl_b32 {s(sT2)}, {s(sT2)}, 3')
    p(f's_and_b32 {s(sT3)}, {s(sT1)}, 7')
    p(f's_add_u32 {s(sC)}, {s(sT2)}, {s(sT3)}')
    p(f's_lshr_b32 {s(sT2)}, {s(sT0)}, 1')
    p(f's_lshl_b32 {s(sT2)}, {s(sT2)}, 2')
    p(f's_lshr_b32 {s(sT1)}, {s(sT1)}, 3')
    p(f's_add_u32 {s(sJ)}, {s(sT2)}, {s(sT1)}')
    p(f's_lshl_b32 {s(sT1)}, {s(sT1)}, 1')
    p(f's_add_u32 {s(sROT)}, {s(sT3)}, {s(sT1)}')
    p(f's_and_b32 {s(sROT)}, {s(sROT)}, 7')
    if opts.get('norot'):
        p(f's_mov_b32 {s(sROT)}, 0')
    p(f's_lshl_b32 {s(sT0)}, {s(sC)}, 7')
    p(f's_lshl_b32 {s(sT1)}, {s(sW_)}, 5')
    p(f's_add_u32 {s(sT0)}, {s(sT0)}, {s(sT1)}')
    p(f's_lshl_b32 {s(sXO)}, {s(sT0)}, 10')
    p(f's_and_b32 {s(sT2)}, {s(sW_)}, 1')
    p(f's_lshr_b32 {s(sT3)}, {s(sW_)}, 1')
    p(f's_lshl_b32 {s(sT0)}, {s(sJ)}, 5')
    p(f's_lshl_b32 {s(sT1)}, {s(sT2)}, 4')
    p(f's_add_u32 {s(sT0)}, {s(sT0)}, {s(sT1)}')
    p(f's_lshl_b32 {s(sBO)}, {s(sT0)}, 10')
    p(f's_mul_i32 {s(sT0)}, {s(sT2)}, {32 * 3584}')
    p(f's_mul_i32 {s(sT1)}, {s(sJ)}, 224')
    p(f's_add_u32 {s(sWO)}, {s(sT0)}, {s(sT1)}')
    p(f's_lshl_b32 {s(sMX)}, {s(sW_)}, 12')
    p(f's_lshl_b32 {s(sT0)}, {s(sT3)}, 12')
    p(f's_lshl_b32 {s(sT1)}, {s(sT2)}, 11')
    p(f's_add_u32 {s(sT0)}, {s(sT0)}, {s(sT1)}')
    p(f's_add_u32 {s(sMB)}, {s(sT0)}, 16384')
    p(f's_mul_i32 {s(sT0)}, {s(sT3)}, {UPOFF}')
    p(f's_mul_i32 {s(sT1)}, {s(sT2)}, 7168')
    p(f's_add_u32 {s(sMW)}, {s(sT0)}, {s(sT1)}')
    p(f's_lshl_b32 {s(sT0)}, {s(sC)}, 2')
    p(f's_add_u32 {s(sT0)}, {s(sT0)}, {s(sW_)}')
    p(f's_mul_i32 {s(sT1)}, {s(sT0)}, 112')
    p(f's_mul_i32 {s(sT2)}, {s(sJ)}, 7')
    p(f's_add_u32 {s(sT1)}, {s(sT1)}, {s(sT2)}')
    p(f's_lshl_b32 {s(sT1)}, {s(sT1)}, 10')
    p(f's_add_u32 {s(sAFO)}, {s(sT1)}, {WS_AF}')
    p(f's_lshl_b32 {s(sT1)}, {s(sT0)}, 4')
    p(f's_add_u32 {s(sT1)}, {s(sT1)}, {s(sJ)}')
    p(f's_lshl_b32 {s(sT1)}, {s(sT1)}, 12')
    p(f's_add_u32 {s(sHFO)}, {s(sT1)}, {WS_HF}')
    if prof:
        p(f's_lshl_b32 {s(sT0)}, s2, 2')
        p(f's_add_u32 {s(sT0)}, {s(sT0)}, {s(sW_)}')
        p(f's_lshl_b32 {s(sT0)}, {s(sT0)}, 7')
        p(f's_add_u32 {s(sPS)}, {s(sT0)}, {WS_PROF}')

    p(f's_mov_b32 {s(49)}, 0')
    t = vPT
    p(f'v_and_b32 {v(vRHO)}, 31, {v(vL)}')
    p(f'v_lshrrev_b32 {v(t)}, 5, {v(vL)}')
    p(f'v_lshlrev_b32 {v(vL16)}, 4, {v(vL)}')
    p(f's_lshl_b32 {s(sT0)}, {s(sW_)}, 1')
    p(f'v_add_u32 {v(vSG)}, {s(sT0)}, {v(t)}')
    p(f'v_bfe_u32 {v(t + 1)}, {v(vRHO)}, 1, 3')
    p(f'v_xor_b32 {v(t + 1)}, {v(t + 1)}, {v(t)}')
    p(f'v_lshlrev_b32 {v(t + 2)}, 7, {v(vRHO)}')
    for i in range(4):
        p(f's_add_u32 {s(sT0)}, {s(sW_)}, {i}')
        p(f's_and_b32 {s(sT0)}, {s(sT0)}, 3')
        p(f's_lshl_b32 {s(sT1)}, {s(sT0)}, 1')
        p(f'v_xor_b32 {v(t + 3)}, {s(sT1)}, {v(t + 1)}')
        p(f'v_lshl_add_u32 {v(t + 3)}, {v(t + 3)}, 4, {v(t + 2)}')
        p(f'v_add_u32 {v(vX[i])}, {s(sMX)}, {v(t + 3)}')
        p(f'v_add_u32 {v(vB[i])}, 0x4000, {v(t + 3)}')
    p(f'v_and_b32 {v(t)}, 7, {v(vL)}')
    p(f'v_lshrrev_b32 {v(t + 1)}, 3, {v(vL)}')
    p(f'v_lshrrev_b32 {v(t + 2)}, 1, {v(t + 1)}')
    p(f'v_xor_b32 {v(t + 2)}, {v(t + 2)}, {v(t)}')
    p(f'v_lshlrev_b32 {v(t + 2)}, 4, {v(t + 2)}')
    p(f'v_xor_b32 {v(t + 3)}, 64, {v(t + 2)}')
    p(f'v_bfe_u32 {v(t + 4)}, {v(t + 1)}, 2, 1')
    p(f'v_lshlrev_b32 {v(t + 4)}, 4, {v(t + 4)}')
    p(f'v_and_b32 {v(t + 5)}, 3, {v(t + 1)}')
    p(f'v_add_u32 {v(t + 4)}, {v(t + 4)}, {v(t + 5)}')
    p(f'v_lshlrev_b32 {v(t + 4)}, 10, {v(t + 4)}')
    for q in range(4):
        p(f'v_add_u32 {v(vXD[q])}, {v(t + 4)}, {v(t + 2 + (q & 1))}')
        if q:
            p(f'v_add_u32 {v(vXD[q])}, {hex(q * 4096)}, {v(vXD[q])}')
    p(f'v_lshlrev_b32 {v(t + 4)}, 10, {v(t + 1)}')
    p(f'v_add_u32 {v(vBD[0])}, {v(t + 4)}, {v(t + 2)}')
    p(f'v_add_u32 {v(vBD[1])}, {v(t + 4)}, {v(t + 3)}')
    p(f'v_add_u32 {v(vBD[1])}, 0x2000, {v(vBD[1])}')
    for n in range(7):
        p(f'v_add_u32 {v(t)}, {64 * n}, {v(vL)}')
        p(f'v_mul_u32_u24 {v(t + 1)}, 0x124a, {v(t)}')
        p(f'v_lshrrev_b32 {v(t + 1)}, 16, {v(t + 1)}')
        p(f'v_mul_u32_u24 {v(t + 2)}, 14, {v(t + 1)}')
        p(f'v_sub_u32 {v(t + 2)}, {v(t)}, {v(t + 2)}')
        p(f'v_mul_u32_u24 {v(t + 1)}, 0xe00, {v(t + 1)}')
        p(f'v_lshl_add_u32 {v(vWD[n])}, {v(t + 2)}, 4, {v(t + 1)}')

    p.wait_lgkm_all()
    p(f's_mov_b32 {s(S_X)}, {s(P_X)}')
    p(f's_mov_b32 {s(S_X + 1)}, {s(P_X + 1)}')
    p(f's_mov_b32 {s(S_X + 2)}, {2048 * 1024}')
    p(f's_mov_b32 {s(S_X + 3)}, 0x20000')
    p(f's_cmp_lt_u32 {s(sW_)}, 2')
    p(f's_cselect_b32 {s(S_B)}, {s(P_BRE)}, {s(P_BIM)}')
    p(f's_cselect_b32 {s(S_B + 1)}, {s(P_BRE + 1)}, {s(P_BIM + 1)}')
    p(f's_cselect_b32 {s(S_W)}, {s(P_WG)}, {s(P_WU)}')
    p(f's_cselect_b32 {s(S_W + 1)}, {s(P_WG + 1)}, {s(P_WU + 1)}')
    p(f's_mov_b32 {s(S_B + 2)}, {512 * 1024}')
    p(f's_mov_b32 {s(S_B + 3)}, 0x20000')
    p(f's_mov_b32 {s(S_W + 2)}, {512 * 3584}')
    p(f's_mov_b32 {s(S_W + 3)}, 0x20000')
    p(f's_mov_b32 {s(S_WS)}, {s(P_WS)}')
    p(f's_mov_b32 {s(S_WS + 1)}, {s(P_WS + 1)}')
    p(f's_mov_b32 {s(S_WS + 2)}, {WS_SIZE}')
    p(f's_mov_b32 {s(S_WS + 3)}, 0x20000')
    stamp()

    p(f'v_mov_b32 {v(t)}, 0')
    p(f'buffer_load_dword {v(vEPL)}, {v(t)}, {s(S_WS, 4)}, 0 offen sc1')
    p(f's_lshl_b32 {s(sT0)}, {s(sJ)}, 5')
    p(f'v_add_u32 {v(t + 1)}, {s(sT0)}, {v(vRHO)}')
    p(f'v_lshlrev_b32 {v(t + 1)}, 1, {v(t + 1)}')
    p(f'global_load_ushort {v(T)}, {v(t + 1)}, {s(P_LRE, 2)}')
    p(f'global_load_ushort {v(T + 1)}, {v(t + 1)}, {s(P_LIM, 2)}')
    p(f'global_load_ushort {v(T + 2)}, {v(t + 1)}, {s(P_LDT, 2)}')

    def dma_stage(n, emit):
        slot = (n % NSLOT) * SLOT
        tag = f'D{n}'
        emit(f's_add_u32 {s(sT0)}, {s(sROT)}, {n & 7}', None)
        emit(f's_and_b32 {s(sT0)}, {s(sT0)}, 7', None)
        if n < 8:
            emit(f's_lshl_b32 {s(sT0)}, {s(sT0)}, 7', None)
            emit(f's_add_u32 {s(sSX)}, {s(sXO)}, {s(sT0)}', None)
            emit(f's_add_u32 {s(sSB)}, {s(sBO)}, {s(sT0)}', None)
            for q in range(4):
                emit(f's_add_u32 m0, {s(sMX)}, {slot + 1024 * q}', None)
                emit(f'buffer_load_dwordx4 {v(vXD[q])}, {s(S_X, 4)}, {s(sSX)} offen lds', tag)
            for q in range(2):
                emit(f's_add_u32 m0, {s(sMB)}, {slot + 1024 * q}', None)
                emit(f'buffer_load_dwordx4 {v(vBD[q])}, {s(S_B, 4)}, {s(sSB)} offen lds', tag)
        else:
            emit(f's_mul_i32 {s(sT0)}, {s(sT0)}, {64 * 3584}', None)
            emit(f's_add_u32 {s(sSW)}, {s(sWO)}, {s(sT0)}', None)
            for q in range(7):
                emit(f's_add_u32 m0, {s(sMW)}, {slot + 1024 * q}', None)
                emit(f'buffer_load_dwordx4 {v(vWD[q])}, {s(S_W, 4)}, {s(sSW)} offen lds', tag)

    for n in range(5):
        dma_stage(n, lambda x, tg: p(x, tag=tg))

    p(f'v_lshrrev_b32 {v(t)}, 4, {v(vL)}')
    p(f'v_and_b32 {v(t + 1)}, 1, {v(t)}')
    p(f'v_lshrrev_b32 {v(t + 2)}, 1, {v(t)}')
    p(f'v_bfe_u32 {v(t + 3)}, {v(vL)}, 2, 2')
    p(f'v_and_b32 {v(t + 4)}, 3, {v(vL)}')
    p(f'v_and_b32 {v(t + 5)}, 1, {v(t + 4)}')
    p(f'v_lshrrev_b32 {v(t + 6)}, 1, {v(t + 4)}')
    p(f'v_lshl_add_u32 {v(t + 7)}, {v(t + 5)}, 1, {v(t + 6)}')
    p(f'v_lshl_add_u32 {v(t + 8)}, {v(t + 2)}, 3, {v(t + 3)}')
    p(f'v_mul_u32_u24 {v(t + 9)}, 224, {v(t + 8)}')
    p(f'v_lshl_add_u32 {v(t + 9)}, {v(t + 7)}, 3, {v(t + 9)}')
    p(f'v_mul_u32_u24 {v(t + 10)}, {hex(UPOFF)}, {v(t + 1)}')
    p(f'v_add_u32 {v(t + 9)}, {v(t + 9)}, {v(t + 10)}')
    for i in range(4):
        p(f's_add_u32 {s(sT0)}, {s(sW_)}, {i}')
        p(f's_and_b32 {s(sT0)}, {s(sT0)}, 3')
        p(f's_mul_i32 {s(sT0)}, {s(sT0)}, {16 * 224}')
        p(f's_add_u32 {s(sT0)}, {s(sT0)}, {(8 % NSLOT) * SLOT}')
        p(f'v_add_u32 {v(vW[i])}, {s(sT0)}, {v(t + 9)}')
    p(f's_mul_i32 {s(sT0)}, {s(sW_)}, 5120')
    p(f's_add_u32 {s(sT0)}, {s(sT0)}, {HT}')
    p(f'v_mul_u32_u24 {v(t + 9)}, 80, {v(t + 8)}')
    p(f'v_lshlrev_b32 {v(t + 10)}, 5, {v(t + 5)}')
    p(f'v_lshl_add_u32 {v(t + 10)}, {v(t + 1)}, 4, {v(t + 10)}')
    p(f'v_lshl_add_u32 {v(t + 10)}, {v(t + 6)}, 3, {v(t + 10)}')
    p(f'v_add3_u32 {v(vHTR)}, {v(t + 9)}, {v(t + 10)}, {s(sT0)}')
    p(f'v_lshrrev_b32 {v(t + 11)}, 5, {v(vL)}')
    p(f'v_mul_u32_u24 {v(t + 9)}, 80, {v(vRHO)}')
    p(f'v_lshl_add_u32 {v(t + 9)}, {v(t + 11)}, 5, {v(t + 9)}')
    p(f'v_add_u32 {v(vHTW)}, {s(sT0)}, {v(t + 9)}')
    p(f'v_and_b32 {v(t + 9)}, 15, {v(vL)}')
    p(f'v_cmp_eq_u32 vcc, {v(t + 9)}, {v(t + 1)}')
    p(f'v_mov_b32 {v(t + 10)}, 0x3f803f80')
    p(f'v_cndmask_b32 {v(t + 12)}, 0, {v(t + 10)}, vcc')
    for k in range(4):
        p(f'v_accvgpr_write_b32 {a(ASEL + k)}, {v(t + 12)}')
    for k in range(2):
        p(f'v_accvgpr_write_b32 {a(AONE + k)}, {v(t + 10)}')
    p(f's_lshl_b32 {s(sT0)}, {s(sW_)}, 2')
    p(f's_add_u32 {s(sT0)}, {s(sT0)}, {CSB}')
    p(f'v_add_u32 {v(t + 9)}, {s(sT0)}, {v(vL16)}')
    p(f'v_lshlrev_b32 {v(t + 10)}, 2, {v(vL)}')
    p(f'v_add_u32 {v(t + 10)}, {hex(DUMMY)}, {v(t + 10)}')
    p(f'v_cmp_gt_u32 vcc, 16, {v(vL)}')
    p(f'v_cndmask_b32 {v(vCSW)}, {v(t + 10)}, {v(t + 9)}, vcc')
    p(f'v_lshlrev_b32 {v(vCSR)}, 4, {v(vRHO)}')
    p(f'v_add_u32 {v(vCSR)}, {hex(CSB)}, {v(vCSR)}')
    p(f'v_lshlrev_b32 {v(vSEGR)}, 3, {v(vRHO)}')
    p(f'v_lshl_add_u32 {v(vSEGW)}, {v(vSG)}, 8, {v(vSEGR)}')
    p(f'v_add_u32 {v(vSEGW)}, {hex(SEG)}, {v(vSEGW)}')
    p(f'v_add_u32 {v(vSEGR)}, {hex(SEG)}, {v(vSEGR)}')
    p(f'v_bfe_u32 {v(t + 9)}, {v(vRHO)}, 2, 1')
    p(f'v_lshlrev_b32 {v(t + 9)}, 4, {v(t + 9)}')
    p(f'v_lshrrev_b32 {v(t + 10)}, 3, {v(vRHO)}')
    p(f'v_lshl_add_u32 {v(t + 9)}, {v(t + 10)}, 2, {v(t + 9)}')
    p(f'v_and_b32 {v(t + 10)}, 3, {v(vRHO)}')
    p(f'v_add_u32 {v(t + 9)}, {v(t + 9)}, {v(t + 10)}')
    p(f's_lshl_b32 {s(sT0)}, {s(sW_)}, 7')
    p(f's_add_u32 {s(sT0)}, {s(sT0)}, {RSB}')
    p(f'v_lshl_add_u32 {v(vRSW)}, {v(t + 9)}, 2, {s(sT0)}')
    p(f'v_lshl_add_u32 {v(vRSR)}, {v(t + 11)}, 6, {s(sT0)}')
    p(f's_lshr_b32 {s(sT0)}, {s(sXO)}, 7')
    p(f's_add_u32 {s(sT0)}, {s(sT0)}, {WS_STATS}')
    p(f's_cmp_eq_u32 {s(sJ)}, 0')
    p(f's_cselect_b32 {s(sT0)}, {s(sT0)}, 0x70000000')
    p(f'v_lshl_add_u32 {v(vSTO)}, {v(t + 9)}, 3, {s(sT0)}')
    p(f'v_mov_b32 {v(t + 10)}, 0x70000000')
    p(f'v_cmp_gt_u32 vcc, 32, {v(vL)}')
    p(f'v_cndmask_b32 {v(vSTO)}, {v(t + 10)}, {v(vSTO)}, vcc')
    p(f's_lshl_b32 {s(sT0)}, {s(sC)}, 4')
    p(f's_add_u32 {s(sT0)}, {s(sT0)}, {s(sJ)}')
    p(f's_lshl_b32 {s(sT0)}, {s(sT0)}, 9')
    p(f's_add_u32 {s(sT0)}, {s(sT0)}, {WS_EG}')
    p(f's_cmp_eq_u32 {s(sW_)}, 0')
    p(f's_cselect_b32 {s(sT0)}, {s(sT0)}, 0x70000000')
    p(f'v_lshl_add_u32 {v(vEOFF)}, {v(vRHO)}, 4, {s(sT0)}')
    p(f'v_cndmask_b32 {v(vEOFF)}, {v(t + 10)}, {v(vEOFF)}, vcc')
    p(f's_lshl_b32 {s(sT0)}, {s(sJ)}, 9')
    p(f's_add_u32 {s(sT0)}, {s(sT0)}, {WS_EG}')
    p(f'v_lshlrev_b32 {v(t + 9)}, 13, {v(vSG)}')
    p(f'v_lshl_add_u32 {v(t + 9)}, {v(vRHO)}, 4, {v(t + 9)}')
    p(f'v_add_u32 {v(vLOFF0)}, {s(sT0)}, {v(t + 9)}')
    p(f'v_add_u32 {v(vLOFF1)}, 0x10000, {v(vLOFF0)}')
    p(f'v_cmp_gt_u32 {s(sNEED0, 2)}, {s(sC)}, {v(vSG)}')
    p(f'v_add_u32 {v(t + 9)}, 8, {v(vSG)}')
    p(f'v_cmp_gt_u32 {s(sNEED1, 2)}, {s(sC)}, {v(t + 9)}')
    for k in (1, 2, 3):
        p(f'v_mov_b32 {v(MF + k)}, 0')
        p(f'v_mov_b32 {v(CF + k)}, 0')

    p(f'v_add_u32 {v(vEPL)}, 1, {v(vEPL)}')
    p(f'v_cmp_eq_u32 vcc, 0, {v(vEPL)}')
    p(f'v_cndmask_b32 {v(vEPL)}, {v(vEPL)}, 1, vcc')
    p(f's_or_b32 {s(sT0)}, s2, {s(sW_)}')
    p(f's_cmp_eq_u32 {s(sT0)}, 0')
    p(f's_cselect_b32 {s(sT0)}, 0, 0x70000000')
    p(f'v_cmp_eq_u32 vcc, 0, {v(vL)}')
    p(f'v_mov_b32 {v(t + 9)}, 0x70000000')
    p(f'v_mov_b32 {v(t + 10)}, {s(sT0)}')
    p(f'v_cndmask_b32 {v(t + 9)}, {v(t + 9)}, {v(t + 10)}, vcc')
    p(f'buffer_store_dword {v(vEPL)}, {v(t + 9)}, {s(S_WS, 4)}, 0 offen sc1')
    p(f's_mov_b32 {s(24)}, {s(P_DBG)}')
    p(f's_mov_b32 {s(25)}, {s(P_DBG + 1)}')
    p(f's_mov_b32 {s(26)}, 256')
    p(f's_mov_b32 {s(27)}, 0x20000')
    p(f'buffer_store_dword {v(vEPL)}, {v(t + 9)}, {s(24, 4)}, 0 offen sc1')

    p(f'v_lshlrev_b32 {v(T)}, 16, {v(T)}')
    p(f'v_lshlrev_b32 {v(T + 1)}, 16, {v(T + 1)}')
    p(f'v_lshlrev_b32 {v(T + 2)}, 16, {v(T + 2)}')
    p(f'v_mul_f32 {v(T + 2)}, {f2h(LOG2E)}, {v(T + 2)}')
    p(f'v_exp_f32 {v(T + 2)}, {v(T + 2)}')
    bf16_round(p, T + 2, T + 2)
    p(f'v_mul_f32 {v(T + 3)}, {v(T + 2)}, {v(T)}')
    p(f'v_mul_f32 {v(T + 4)}, {v(T + 2)}, {v(T + 1)}')
    p(f'v_mul_f32 {v(vZR)}, {f2h(LOG2E)}, {v(T + 3)}')
    p(f'v_mul_f32 {v(vZI)}, {f2h(INV2PI)}, {v(T + 4)}')
    p(f'v_mov_b32 {v(T + 5)}, 1.0')
    cexp(p, vAR, vAI, T + 5, T + 6)
    p(f'v_mov_b32 {v(T + 5)}, 0x41800000')
    cexp(p, vA16R, vA16I, T + 5, T + 6)
    p(f'v_cvt_f32_u32 {v(T + 5)}, {v(vSG)}')
    p(f'v_mul_f32 {v(T + 5)}, 0x41800000, {v(T + 5)}')
    cexp(p, vPWR, vPWI, T + 5, T + 6)
    p(f'v_add_f32 {v(T + 5)}, -1.0, {v(vAR)}')
    p(f'v_mul_f32 {v(T + 6)}, {v(T)}, {v(T)}')
    p(f'v_fma_f32 {v(T + 6)}, {v(T + 1)}, {v(T + 1)}, {v(T + 6)}')
    p(f'v_rcp_f32 {v(T + 6)}, {v(T + 6)}')
    p(f'v_mul_f32 {v(T + 7)}, {v(T + 5)}, {v(T)}')
    p(f'v_fma_f32 {v(T + 7)}, {v(vAI)}, {v(T + 1)}, {v(T + 7)}')
    p(f'v_mul_f32 {v(T + 8)}, {v(vAI)}, {v(T)}')
    p(f'v_fma_f32 {v(T + 8)}, -{v(T + 5)}, {v(T + 1)}, {v(T + 8)}')
    p(f'v_add_f32 {v(T + 6)}, {v(T + 6)}, {v(T + 6)}')
    p(f'v_mul_f32 {v(vCR)}, {v(T + 7)}, {v(T + 6)}')
    p(f'v_mul_f32 {v(vCI)}, {v(T + 8)}, {v(T + 6)}')
    for e, (dr, di) in enumerate(((vP0R, vP0I), (vP1R, vP1I))):
        p(f's_sub_u32 {s(sT0)}, {s(sC)}, {1 + 8 * e}')
        p(f'v_sub_u32 {v(T + 5)}, {s(sT0)}, {v(vSG)}')
        p(f'v_max_i32 {v(T + 5)}, 0, {v(T + 5)}')
        p(f'v_cvt_f32_u32 {v(T + 5)}, {v(T + 5)}')
        p(f'v_mul_f32 {v(T + 5)}, 0x43000000, {v(T + 5)}')
        cexp(p, dr, di, T + 5, T + 6)
    stamp()

    def slot_delta(n):
        return ((n + 1) % NSLOT - n % NSLOT) * SLOT

    dq = deque()

    def barrier(n):
        assert not any(tg == f'D{n}' for _, tg in dq), f'stage {n} DMA not fully issued'
        p.wait_vm_tag(f'D{n}')
        p('s_barrier')
        sd.event(f'B{n}')

    def queue_dma(n):
        if 5 <= n <= 15:
            dma_stage(n, lambda x, tg: dq.append((x, tg)))

    def pop_dma(k):
        while k > 0 and dq:
            x, tg = dq.popleft()
            p(x, tag=tg)
            if x.startswith('buffer'):
                k -= 1

    def p1_reads(n, i):
        buf = BF + 8 * ((4 * n + i) & 1)
        p(f'ds_read_b128 {a(AX + 4 * (4 * n + i), 4)}, {v(vX[i])}')
        p(f'ds_read_b128 {v(buf, 4)}, {v(vB[i])}')
        p(f'ds_read_b128 {v(buf + 4, 4)}, {v(vB[i])} offset:4096')
        if n < 7:
            d = slot_delta(n)
            p(f'v_add_u32 {v(vX[i])}, {hex(d & 0xffffffff)}, {v(vX[i])}')
            p(f'v_add_u32 {v(vB[i])}, {hex(d & 0xffffffff)}, {v(vB[i])}')

    NFR = 8 * 4 * 7
    PD = 4

    def p2_read(q):
        n = 8 + q // 28; i = (q // 7) % 4; tl = q % 7
        r = RING + 4 * (q % 6)
        p(f'ds_read_b64_tr_b16 {v(r, 2)}, {v(vW[i])} offset:{32 * tl}')
        p(f'ds_read_b64_tr_b16 {v(r + 2, 2)}, {v(vW[i])} offset:{32 * tl + 896}')
        if tl == 6 and n < 15:
            p(f'v_add_u32 {v(vW[i])}, {hex(slot_delta(n) & 0xffffffff)}, {v(vW[i])}')

    barrier(0)
    stamp()
    p1_reads(0, 0)
    for n in range(8):
        for i in range(4):
            k = 4 * n + i
            buf = BF + 8 * (k & 1)
            xf = a(AX + 4 * k, 4)
            c0 = '0' if k == 0 else None
            p(f'v_mfma_f32_32x32x16_bf16 {v(SR, 16)}, {xf}, {v(buf, 4)}, {c0 or v(SR, 16)}')
            if i == 3:
                if n < 7:
                    barrier(n + 1)
                    queue_dma(n + 4)
                    p1_reads(n + 1, 0)
                else:
                    p.wait_lgkm_all()
                    barrier(8)
                    queue_dma(11)
                    for q in range(PD):
                        p2_read(q)
            else:
                p1_reads(n, i + 1)
            p(f'v_mfma_f32_32x32x16_bf16 {v(SI, 16)}, {xf}, {v(buf + 4, 4)}, {c0 or v(SI, 16)}')
            pop_dma(2)
            if i == 0:
                cz = n == 0
                p(f'v_mfma_f32_16x16x32_bf16 {a(ACSB, 4)}, {a(ASEL, 4)}, {v(buf, 4)}, {"0" if cz else a(ACSB, 4)}')
                p(f'v_mfma_f32_16x16x32_bf16 {a(ACSB + 4, 4)}, {a(ASEL, 4)}, {v(buf + 4, 4)}, {"0" if cz else a(ACSB + 4, 4)}')
            x0 = a(AX + 4 * k, 2); x1 = a(AX + 4 * k + 2, 2)
            z = k == 0
            p(f'v_mfma_f32_4x4x4bf16_1k {a(AS0, 4)}, {a(AONE, 2)}, {x0}, {"0" if z else a(AS0, 4)}')
            p(f'v_mfma_f32_4x4x4bf16_1k {a(AQ0, 4)}, {x0}, {x0}, {"0" if z else a(AQ0, 4)}')
            p(f'v_mfma_f32_4x4x4bf16_1k {a(AS1, 4)}, {a(AONE, 2)}, {x1}, {"0" if z else a(AS1, 4)}')
            p(f'v_mfma_f32_4x4x4bf16_1k {a(AQ1, 4)}, {x1}, {x1}, {"0" if z else a(AQ1, 4)}')
            if n == 7 and i == 1:
                for mm in range(2):
                    p(f'ds_write_b32 {v(vCSW)}, {a(ACSB + 4 * mm)} offset:{(7 + mm) * 512}')
                    p(f'ds_write_b32 {v(vCSW)}, {a(ACSB + 4 * mm + 1)} offset:{(7 + mm) * 512 + 256}')
    stamp()

    def cs_frag(tile):
        L = []
        L.append(f'ds_read_b128 {v(T + 24, 4)}, {v(vCSR)} offset:{tile * 512}')
        L.append(f'v_add_f32 {v(T + 24)}, {v(T + 24)}, {v(T + 25)}')
        L.append(f'v_add_f32 {v(T + 26)}, {v(T + 26)}, {v(T + 27)}')
        L.append(f'v_add_f32 {v(T + 24)}, {v(T + 24)}, {v(T + 26)}')
        L.append(f'v_cvt_pk_bf16_f32 {v(T + 25)}, {v(T + 24)}, {v(T + 24)}')
        L.append(f'v_lshlrev_b32 {v(T + 25)}, 16, {v(T + 25)}')
        L.append(f'v_sub_f32 {v(T + 26)}, {v(T + 24)}, {v(T + 25)}')
        L.append(f'v_cvt_pk_bf16_f32 {v(CF)}, {v(T + 25)}, {v(T + 26)}')
        return '\n'.join(L)

    A = sd.add
    for k in range(4):
        A(f'v_accvgpr_read_b32 {v(T + k)}, {a(AQ0 + k)}')
        A(f'v_accvgpr_read_b32 {v(T + 4 + k)}, {a(AQ1 + k)}')
    A(f'v_accvgpr_read_b32 {v(T + 8)}, {a(AS0)}')
    A(f'v_accvgpr_read_b32 {v(T + 9)}, {a(AS1)}')
    for k in range(4):
        A(f'v_add_f32 {v(T + k)}, {v(T + k)}, {v(T + 4 + k)}')
    A(f'v_add_f32 {v(T + 8)}, {v(T + 8)}, {v(T + 9)}')
    A(f'v_and_b32 {v(T + 9)}, 3, {v(vL)}')
    for k in (1, 2, 3):
        A(f'v_cmp_eq_u32 vcc, {k}, {v(T + 9)}')
        A(f'v_cndmask_b32 {v(T)}, {v(T)}, {v(T + k)}, vcc')
    A(f'v_mov_b32 {v(T + 1)}, {v(T)}')
    A(f'v_mov_b32 {v(T + 9)}, {v(T + 8)}')
    A(f'v_mov_b32 {v(T + 2)}, {f2h(1.0 / 512)}')
    A(f'v_permlane32_swap_b32 {v(T)}, {v(T + 1)}')
    A(f'v_permlane32_swap_b32 {v(T + 8)}, {v(T + 9)}')
    A(f'v_add_f32 {v(T)}, {v(T)}, {v(T + 1)}')
    A(f'v_add_f32 {v(T + 8)}, {v(T + 8)}, {v(T + 9)}')
    A(f'v_mul_f32 {v(T + 8)}, {v(T + 8)}, {v(T + 2)}')
    A(f'v_mul_f32 {v(T)}, {v(T)}, {v(T + 2)}')
    A(f'v_fma_f32 {v(T)}, -{v(T + 8)}, {v(T + 8)}, {v(T)}')
    A(f'v_max_f32 {v(T)}, 0, {v(T)}')
    A(f'v_cvt_pk_bf16_f32 {v(vM)}, {v(T + 8)}, {v(T + 8)}')
    A(f'v_cvt_pk_bf16_f32 {v(T)}, {v(T)}, {v(T)}')
    A(f'v_xor_b32 {v(T + 3)}, 0x80008000, {v(vM)}')
    A(f'v_lshlrev_b32 {v(T)}, 16, {v(T)}')
    A(f'v_cmp_gt_u32 vcc, 32, {v(vL)}')
    A(f'v_add_f32 {v(T)}, {f2h(1e-5)}, {v(T)}')
    A(f'v_cndmask_b32 {v(MF)}, 0, {v(T + 3)}, vcc')
    A(f'v_cvt_pk_bf16_f32 {v(T)}, {v(T)}, {v(T)}')
    A(f'v_lshlrev_b32 {v(vM)}, 16, {v(vM)}')
    A(f'v_lshlrev_b32 {v(T)}, 16, {v(T)}')
    A(f'v_sqrt_f32 {v(T)}, {v(T)}')
    A(cs_frag(7))
    A(f'v_cvt_pk_bf16_f32 {v(T)}, {v(T)}, {v(T)}')
    A(f'v_lshlrev_b32 {v(T)}, 16, {v(T)}')
    A(f'v_mfma_f32_32x32x16_bf16 {v(SR, 16)}, {v(MF, 4)}, {v(CF, 4)}, {v(SR, 16)}')
    A(f'v_rcp_f32 {v(vRS)}, {v(T)}')
    A(f'v_mul_f32 {v(vKQ)}, {v(T)}, {v(T)}')
    A(cs_frag(8))
    A(f'v_mul_f32 {v(vC1)}, {f2h(-LOG2E)}, {v(vRS)}')
    A(f'ds_write_b32 {v(vRSW)}, {v(vRS)}')
    A(f'v_mfma_f32_32x32x16_bf16 {v(SI, 16)}, {v(MF, 4)}, {v(CF, 4)}, {v(SI, 16)}')
    A(f'buffer_store_dwordx2 {v(vM, 2)}, {v(vSTO)}, {s(S_WS, 4)}, 0 offen')
    for k in range(4):
        A(f'ds_read_b128 {v(T + 4 * k, 4)}, {v(vRSR)} offset:{16 * k}')
    A(f'v_mov_b32 {v(T + 16)}, 0')
    A(f'buffer_load_dword {v(vEPL)}, {v(T + 16)}, {s(24, 4)}, 0 offen sc1')
    for k in range(16):
        A(f'v_mul_f32 {v(SR + k)}, {v(SR + k)}, {v(T + k)}')
        A(f'v_mul_f32 {v(SI + k)}, {v(SI + k)}, {v(T + k)}')

    def scan_step(er, ei, wr, wi, cr, ci, t0):
        return (f'v_fma_f32 {v(t0)}, {v(cr)}, {v(er)}, {v(wr)}\n'
                f'v_fma_f32 {v(t0 + 1)}, {v(cr)}, {v(ei)}, {v(wi)}\n'
                f'v_fma_f32 {v(t0)}, -{v(ci)}, {v(ei)}, {v(t0)}\n'
                f'v_fma_f32 {v(ei)}, {v(ci)}, {v(er)}, {v(t0 + 1)}\n'
                f'v_mov_b32 {v(er)}, {v(t0)}')

    def scan_step2(nr, ni, er, ei, wr, wi, cr, ci):
        return (f'v_fma_f32 {v(nr)}, {v(cr)}, {v(er)}, {v(wr)}\n'
                f'v_fma_f32 {v(ni)}, {v(cr)}, {v(ei)}, {v(wi)}\n'
                f'v_fma_f32 {v(nr)}, -{v(ci)}, {v(ei)}, {v(nr)}\n'
                f'v_fma_f32 {v(ni)}, {v(ci)}, {v(er)}, {v(ni)}')

    cur = (SR, SI)
    for k in range(1, 16):
        nxt = (T, T + 1) if k & 1 else (T + 2, T + 3)
        A(scan_step2(nxt[0], nxt[1], cur[0], cur[1], SR + k, SI + k, vAR, vAI))
        cur = nxt
    assert cur == (T, T + 1)
    A(f'ds_write_b64 {v(vSEGW)}, {v(T, 2)}')
    sd.mark('segw')
    A(f'v_readfirstlane_b32 {s(sEP)}, {v(vEPL)}', after='BSEG')
    sd.call(lambda: (p(f's_cmp_eq_u32 {s(sEP)}, 0'), p('s_cbranch_scc1 K1_EPSPIN'), p.label('K1_EPBACK')))
    ER = T + 4
    for k in range(8):
        A(f'ds_read_b64 {v(ER + 2 * k, 2)}, {v(vSEGR)} offset:{256 * k}')
    RR = [(T, T + 1), (T + 2, T + 3)]
    CIN = (T + 20, T + 21)
    A(f'v_mov_b32 {v(CIN[0])}, 0')
    A(f'v_mov_b32 {v(CIN[1])}, 0')
    cur = (ER, ER + 1)
    for k in range(1, 8):
        A(f'v_cmp_eq_u32 vcc, {k}, {v(vSG)}')
        nxt = RR[k & 1]
        A(scan_step2(nxt[0], nxt[1], cur[0], cur[1], ER + 2 * k, ER + 2 * k + 1, vA16R, vA16I))
        A(f'v_cndmask_b32 {v(CIN[0])}, {v(CIN[0])}, {v(cur[0])}, vcc')
        A(f'v_cndmask_b32 {v(CIN[1])}, {v(CIN[1])}, {v(cur[1])}, vcc')
        cur = nxt
    A(f'v_mov_b32 {v(T + 4)}, {v(cur[0])}')
    A(f'v_mov_b32 {v(T + 5)}, {s(sEP)}')
    A(f'v_mov_b32 {v(T + 6)}, {v(cur[1])}')
    A(f'v_mov_b32 {v(T + 7)}, {s(sEP)}')
    A(f'buffer_store_dwordx4 {v(T + 4, 4)}, {v(vEOFF)}, {s(S_WS, 4)}, 0 offen sc1')
    sd.mark('epub')
    A(f'buffer_load_dwordx4 {v(T + 4, 4)}, {v(vLOFF0)}, {s(S_WS, 4)}, 0 offen sc1', after='LBLOAD')
    A(f'buffer_load_dwordx4 {v(T + 8, 4)}, {v(vLOFF1)}, {s(S_WS, 4)}, 0 offen sc1')
    sd.mark('lbissued')

    def lb_check():
        p.label('K1_LBBACK')
        p(f'v_cmp_ne_u32 {s(sM0, 2)}, {s(sEP)}, {v(T + 5)}')
        p(f'v_cmp_ne_u32 vcc, {s(sEP)}, {v(T + 7)}')
        p(f's_or_b64 {s(sM0, 2)}, {s(sM0, 2)}, vcc')
        p(f's_and_b64 {s(sM0, 2)}, {s(sM0, 2)}, {s(sNEED0, 2)}')
        p(f'v_cmp_ne_u32 {s(sM1, 2)}, {s(sEP)}, {v(T + 9)}')
        p(f'v_cmp_ne_u32 vcc, {s(sEP)}, {v(T + 11)}')
        p(f's_or_b64 {s(sM1, 2)}, {s(sM1, 2)}, vcc')
        p(f's_and_b64 {s(sM1, 2)}, {s(sM1, 2)}, {s(sNEED1, 2)}')
        p(f's_or_b64 {s(sM0, 2)}, {s(sM0, 2)}, {s(sM1, 2)}')
        p(f's_cbranch_scc1 K1_LBSPIN')
    sd.call(lb_check, after='LBCHECK')
    A(f'v_cndmask_b32 {v(T + 4)}, 0, {v(T + 4)}, {s(sNEED0, 2)}')
    A(f'v_cndmask_b32 {v(T + 6)}, 0, {v(T + 6)}, {s(sNEED0, 2)}')
    A(f'v_cndmask_b32 {v(T + 8)}, 0, {v(T + 8)}, {s(sNEED1, 2)}')
    A(f'v_cndmask_b32 {v(T + 10)}, 0, {v(T + 10)}, {s(sNEED1, 2)}')
    A(f'v_mul_f32 {v(T)}, {v(vP0R)}, {v(T + 4)}')
    A(f'v_mul_f32 {v(T + 1)}, {v(vP0R)}, {v(T + 6)}')
    A(f'v_fma_f32 {v(T)}, -{v(vP0I)}, {v(T + 6)}, {v(T)}')
    A(f'v_fma_f32 {v(T + 1)}, {v(vP0I)}, {v(T + 4)}, {v(T + 1)}')
    A(f'v_fma_f32 {v(T)}, {v(vP1R)}, {v(T + 8)}, {v(T)}')
    A(f'v_fma_f32 {v(T + 1)}, {v(vP1R)}, {v(T + 10)}, {v(T + 1)}')
    A(f'v_fma_f32 {v(T)}, -{v(vP1I)}, {v(T + 10)}, {v(T)}')
    A(f'v_fma_f32 {v(T + 1)}, {v(vP1I)}, {v(T + 8)}, {v(T + 1)}')
    A(f'ds_write_b64 {v(vSEGW)}, {v(T, 2)} offset:2048')
    sd.mark('lbw')
    for k in range(8):
        A(f'ds_read_b64 {v(ER + 2 * k, 2)}, {v(vSEGR)} offset:{2048 + 256 * k}', after='BLB')
    for st in (1, 2, 4):
        for k in range(0, 8, 2 * st):
            A(f'v_add_f32 {v(ER + 2 * k)}, {v(ER + 2 * k)}, {v(ER + 2 * (k + st))}')
            A(f'v_add_f32 {v(ER + 2 * k + 1)}, {v(ER + 2 * k + 1)}, {v(ER + 2 * (k + st) + 1)}')
    A(scan_step2(T, T + 1, ER, ER + 1, CIN[0], CIN[1], vPWR, vPWI))
    cur = (T, T + 1)
    for k in range(16):
        nxt = (T + 2, T + 3) if cur == (T, T + 1) else (T, T + 1)
        A(scan_step2(nxt[0], nxt[1], cur[0], cur[1], SR + k, SI + k, vAR, vAI))
        cur = nxt
        A(f'v_mul_f32 {v(SR + k)}, {v(vCR)}, {v(cur[0])}')
        A(f'v_mul_f32 {v(SI + k)}, {v(vCR)}, {v(cur[1])}')
        A(f'v_fma_f32 {v(SR + k)}, -{v(vCI)}, {v(cur[1])}, {v(SR + k)}')
        A(f'v_fma_f32 {v(SI + k)}, {v(vCI)}, {v(cur[0])}, {v(SI + k)}')
        if k & 1:
            A(f'v_cvt_pk_bf16_f32 {v(T + 4 + k // 2)}, {v(SR + k - 1)}, {v(SR + k)}')
            A(f'v_cvt_pk_bf16_f32 {v(T + 12 + k // 2)}, -{v(SI + k - 1)}, -{v(SI + k)}')
    A(f'ds_write_b128 {v(vHTW)}, {v(T + 4, 4)}', after='B13')
    A(f'ds_write_b128 {v(vHTW)}, {v(T + 8, 4)} offset:16')
    A(f'ds_write_b128 {v(vHTW)}, {v(T + 12, 4)} offset:{32 * 80}')
    A(f'ds_write_b128 {v(vHTW)}, {v(T + 16, 4)} offset:{32 * 80 + 16}')
    for sub in range(4):
        A(f'ds_read_b64_tr_b16 {v(T + 4 + 4 * sub, 2)}, {v(vHTR)} offset:{sub * 1280}')
        A(f'ds_read_b64_tr_b16 {v(T + 6 + 4 * sub, 2)}, {v(vHTR)} offset:{sub * 1280 + 320}')
    for sub in range(4):
        A(f's_add_u32 {s(sT1)}, {s(sHFO)}, {1024 * sub}')
        A(f'buffer_store_dwordx4 {v(T + 4 + 4 * sub, 4)}, {v(vL16)}, {s(S_WS, 4)}, {s(sT1)} offen')
    sd.mark('hdone')

    quota = opts.get('quota', 3)
    for q in range(NFR):
        n = 8 + q // 28; i = (q // 7) % 4; tl = q % 7
        r = RING + 4 * (q % 6)
        acc = v(FA + 16 * tl, 16)
        xf = a(AX + 4 * (4 * (n - 8) + i), 4)
        first = (n == 8 and i == 0)
        p(f'v_mfma_f32_32x32x16_bf16 {acc}, {v(r, 4)}, {xf}, {"0" if first else acc}')
        if i == 0:
            ca = a(ACS + 4 * tl, 4)
            p(f'v_mfma_f32_16x16x32_bf16 {ca}, {a(ASEL, 4)}, {v(r, 4)}, {"0" if n == 8 else ca}')
        qq = q + PD
        if qq < NFR:
            nn = 8 + qq // 28
            if qq % 28 == 0:
                if nn == 10:
                    sd.flush_until('segw'); p.wait_lgkm_all()
                if nn == 14:
                    sd.flush_until('lbw'); p.wait_lgkm_all()
                barrier(nn)
                if nn == 10:
                    sd.event('BSEG')
                if nn == 14:
                    sd.event('BLB')
                queue_dma(nn + 3)
            p2_read(qq)
        if n == 12 and i == 1 and tl == 0:
            sd.flush_until('epub'); sd.event('LBLOAD')
        if n == 13 and i == 1 and tl == 0:
            sd.flush_until('lbissued'); sd.event('LBCHECK')
        if n == 15 and i == 1:
            p(f'ds_write_b32 {v(vCSW)}, {a(ACS + 4 * tl)} offset:{tl * 512}')
            p(f'ds_write_b32 {v(vCSW)}, {a(ACS + 4 * tl + 1)} offset:{tl * 512 + 256}')
        pop_dma(1)
        sd.pop(quota)
        if tl == 6 and i == 3:
            stamp()

    sd.flush()
    p.wait_lgkm_all()
    p('s_barrier')
    for tl in range(7):
        p(cs_frag(tl))
        acc = v(FA + 16 * tl, 16)
        p(f'v_mfma_f32_32x32x16_bf16 {acc}, {v(CF, 4)}, {v(MF, 4)}, {acc}')
    stamp()
    for tl in range(7):
        g0 = FA + 16 * tl
        E = T
        for k in range(8):
            p(f'v_mul_f32 {v(E + k)}, {v(g0 + k)}, {v(vC1)}')
        for k in range(8):
            p(f'v_exp_f32 {v(E + k)}, {v(E + k)}')
        for k in range(8):
            p(f'v_mul_f32 {v(g0 + k)}, {v(g0 + k)}, {v(g0 + 8 + k)}')
        for k in range(8):
            p(f'v_fma_f32 {v(E + k)}, {v(E + k)}, {v(vKQ)}, {v(vKQ)}')
        for k in range(8):
            p(f'v_rcp_f32 {v(E + k)}, {v(E + k)}')
        for k in range(8):
            p(f'v_mul_f32 {v(g0 + k)}, {v(g0 + k)}, {v(E + k)}')
        o = T + 8 + 4 * (tl & 1)
        for k in range(4):
            p(f'v_cvt_pk_bf16_f32 {v(o + k)}, {v(g0 + 2 * k)}, {v(g0 + 2 * k + 1)}')
        p(f's_add_u32 {s(sT1)}, {s(sAFO)}, {1024 * tl}')
        p(f'buffer_store_dwordx4 {v(o, 4)}, {v(vL16)}, {s(S_WS, 4)}, {s(sT1)} offen')
    stamp()
    p('s_endpgm')

    q = Prog()
    q.label('K1_EPSPIN')
    q(f's_mov_b32 {s(sT2)}, 0x20000')
    q.label('K1_EPSPIN_L')
    q(f'v_mov_b32 {v(T + 16)}, 0')
    q(f'buffer_load_dword {v(vEPL)}, {v(T + 16)}, {s(24, 4)}, 0 offen sc1')
    q('s_waitcnt vmcnt(0)')
    q(f'v_readfirstlane_b32 {s(sEP)}, {v(vEPL)}')
    q(f's_cmp_lg_u32 {s(sEP)}, 0')
    q('s_cbranch_scc1 K1_EPBACK')
    q(f's_sub_u32 {s(sT2)}, {s(sT2)}, 1')
    q(f's_cmp_lg_u32 {s(sT2)}, 0')
    q('s_cbranch_scc1 K1_EPSPIN_L')
    q('s_branch K1_EPBACK')
    q.label('K1_LBSPIN')
    q(f's_add_u32 {s(49)}, {s(49)}, 1')
    q(f's_cmp_gt_u32 {s(49)}, 0x8000')
    q('s_cbranch_scc1 K1_LBGIVE')
    q(f'buffer_load_dwordx4 {v(T + 4, 4)}, {v(vLOFF0)}, {s(S_WS, 4)}, 0 offen sc1')
    q(f'buffer_load_dwordx4 {v(T + 8, 4)}, {v(vLOFF1)}, {s(S_WS, 4)}, 0 offen sc1')
    q('s_waitcnt vmcnt(0)')
    q('s_branch K1_LBBACK')
    q.label('K1_LBGIVE')
    q(f's_mov_b64 {s(sNEED0, 2)}, 0')
    q(f's_mov_b64 {s(sNEED1, 2)}, 0')
    q('s_branch K1_LBBACK')
    q.label('K1_DONE')
    q('s_endpgm')

    lines = p.finalize(verbose=True) + q.finalize()
    return lines
```

```python
from collections import deque
from kf import Prog
from k1 import (WS_STATS, WS_HF, WS_AF, WS_PROF, WS_SIZE, v, a, s, f2h, LOG2E,
                P_X, P_CRE, P_CIM, P_DSK, P_WD, P_OUT, P_WS)

LDS_K2 = 163840
YP = 0
RINGB = 65536

S_WD, S_CRE, S_CIM, S_WS, S_X, S_OUT, S_CT = 8, 12, 16, 20, 24, 28, 36
sW_, sRT, sCT, sROTY, sROTF = 32, 33, 34, 35, 40
sRING = 41
sAO = 42
sBO = 43
sT0, sT1, sT2, sT3 = 44, 45, 46, 47
sHB, sAB = 48, 49
sA1 = 50
sSTAMP = 84
sPS = 86

vL, vL16 = 1, 2
vFD = 3
vCD = [4, 5]
vFR = [6, 7]
vCR = [8, 9, 10, 11]
vPW = [12, 13, 14, 15]
vRD = [16, 17, 18]
vOO = 19
WR = 20
XR = 36
ST = 44
DK = 52
XF = 60
SK = 76
T = 92
ACC = 128
R2 = 192


def build(prof=False, opts=None):
    opts = opts or {}
    p = Prog()
    nstamp = [0]

    def stamp():
        if not prof:
            return
        k = nstamp[0]; nstamp[0] += 1
        p(f's_memtime {s(sSTAMP, 2)}')
        p.wait_lgkm_all()
        p(f'v_mov_b32 {v(127)}, {s(sSTAMP)}')
        p(f's_add_u32 {s(sT3)}, {s(sPS)}, {4 * k}')
        p(f'v_mov_b32 {v(126)}, {s(sT3)}')
        p(f'buffer_store_dword {v(127)}, {v(126)}, {s(S_WS, 4)}, 0 offen')

    p('s_cmp_ge_u32 s2, 0x100')
    p('s_cbranch_scc1 K2_DONE')
    p(f's_load_dwordx16 {s(52, 16)}, s[0:1], 0')
    p(f's_load_dwordx16 {s(68, 16)}, s[0:1], 64')
    p(f'v_and_b32 {v(vL)}, 63, v0')
    p(f'v_lshrrev_b32 v2, 6, v0')
    p(f'v_readfirstlane_b32 {s(sW_)}, v2')
    p(f's_and_b32 {s(sT0)}, s2, 7')
    p(f's_lshr_b32 {s(sT1)}, s2, 3')
    p(f's_lshr_b32 {s(sT2)}, {s(sT1)}, 3')
    p(f's_lshl_b32 {s(sT0)}, {s(sT0)}, 2')
    p(f's_add_u32 {s(sRT)}, {s(sT0)}, {s(sT2)}')
    p(f's_and_b32 {s(sCT)}, {s(sT1)}, 7')
    p(f's_add_u32 {s(sROTY)}, {s(sCT)}, {s(sT2)}')
    p(f's_and_b32 {s(sROTY)}, {s(sROTY)}, 3')
    p(f's_lshl_b32 {s(sT2)}, {s(sT2)}, 1')
    p(f's_add_u32 {s(sROTF)}, {s(sCT)}, {s(sT2)}')
    p(f's_sub_u32 {s(sT0)}, {s(sROTF)}, 7')
    p(f's_cmp_ge_u32 {s(sROTF)}, 7')
    p(f's_cselect_b32 {s(sROTF)}, {s(sT0)}, {s(sROTF)}')
    if opts.get('norot'):
        p(f's_mov_b32 {s(sROTY)}, 0')
        p(f's_mov_b32 {s(sROTF)}, 0')
    p(f's_mul_i32 {s(sRING)}, {s(sW_)}, 24576')
    p(f's_add_u32 {s(sRING)}, {s(sRING)}, {RINGB}')
    p(f's_lshl_b32 {s(sT0)}, {s(sRT)}, 17')
    p(f's_add_u32 {s(sHB)}, {s(sT0)}, {WS_HF}')
    p(f's_mul_i32 {s(sT0)}, {s(sRT)}, {2 * 112 * 1024}')
    p(f's_add_u32 {s(sAB)}, {s(sT0)}, {WS_AF}')
    if prof:
        p(f's_lshl_b32 {s(sT0)}, s2, 2')
        p(f's_add_u32 {s(sT0)}, {s(sT0)}, {s(sW_)}')
        p(f's_lshl_b32 {s(sT0)}, {s(sT0)}, 7')
        p(f's_add_u32 {s(sPS)}, {s(sT0)}, {WS_PROF + 0x40000}')

    t = R2
    p(f'v_lshlrev_b32 {v(vL16)}, 4, {v(vL)}')
    p(f'v_and_b32 {v(t)}, 7, {v(vL)}')
    p(f'v_lshrrev_b32 {v(t + 1)}, 3, {v(vL)}')
    p(f'v_lshlrev_b32 {v(t + 2)}, 10, {v(t + 1)}')
    p(f'v_bfe_u32 {v(t + 3)}, {v(t + 1)}, 1, 1')
    p(f'v_lshlrev_b32 {v(t + 3)}, 2, {v(t + 3)}')
    p(f'v_xor_b32 {v(t + 3)}, {v(t + 3)}, {v(t)}')
    p(f'v_lshl_add_u32 {v(vFD)}, {v(t + 3)}, 4, {v(t + 2)}')
    p(f'v_lshrrev_b32 {v(t + 3)}, 1, {v(t + 1)}')
    p(f'v_xor_b32 {v(t + 3)}, {v(t + 3)}, {v(t)}')
    p(f'v_lshl_add_u32 {v(vCD[0])}, {v(t + 3)}, 4, {v(t + 2)}')
    p(f'v_xor_b32 {v(vCD[1])}, 64, {v(vCD[0])}')

    p.wait_lgkm_all()

    def srd(d, ptr, size):
        p(f's_mov_b32 {s(d)}, {s(ptr)}')
        p(f's_mov_b32 {s(d + 1)}, {s(ptr + 1)}')
        p(f's_mov_b32 {s(d + 2)}, {size}')
        p(f's_mov_b32 {s(d + 3)}, 0x20000')
    srd(S_WD, P_WD, 1792 * 1024)
    srd(S_CRE, P_CRE, 512 * 1024)
    srd(S_CIM, P_CIM, 512 * 1024)
    srd(S_WS, P_WS, WS_SIZE)
    srd(S_X, P_X, 2048 * 1024)
    srd(S_OUT, P_OUT, 2048 * 2048)
    srd(S_CT, P_CRE, 512 * 1024)
    stamp()

    def stage_parts(n):
        slot = (n % 3) * 8192
        tag = f'S{n}'
        setup = []; bd = []; al = {}
        if n < 4:
            setup.append(f's_add_u32 {s(sT0)}, {s(sROTY)}, {n}')
            setup.append(f's_and_b32 {s(sT0)}, {s(sT0)}, 3')
            setup.append(f's_lshl_b32 {s(sT1)}, {s(sW_)}, 2')
            setup.append(f's_add_u32 {s(sT0)}, {s(sT0)}, {s(sT1)}')
            setup.append(f's_and_b32 {s(sT1)}, {s(sT0)}, 1')
            setup.append(f's_lshr_b32 {s(sT0)}, {s(sT0)}, 1')
            setup.append(f's_cmp_eq_u32 {s(sT1)}, 0')
            setup.append(f's_cselect_b32 {s(S_CT)}, {s(S_CRE)}, {s(S_CIM)}')
            setup.append(f's_cselect_b32 {s(S_CT + 1)}, {s(S_CRE + 1)}, {s(S_CIM + 1)}')
            setup.append(f's_lshl_b32 {s(sT2)}, {s(sCT)}, 16')
            setup.append(f's_lshl_b32 {s(sBO)}, {s(sT0)}, 7')
            setup.append(f's_add_u32 {s(sBO)}, {s(sBO)}, {s(sT2)}')
            setup.append(f's_lshl_b32 {s(sAO)}, {s(sT0)}, 13')
            setup.append(f's_lshl_b32 {s(sT1)}, {s(sT1)}, 11')
            setup.append(f's_add_u32 {s(sAO)}, {s(sAO)}, {s(sT1)}')
            setup.append(f's_add_u32 {s(sAO)}, {s(sAO)}, {s(sHB)}')
            for q in range(8):
                bd.append([f's_add_u32 m0, {s(sRING)}, {slot + 1024 * q}',
                           f's_add_u32 {s(sT3)}, {s(sBO)}, {8192 * q}',
                           f'buffer_load_dwordx4 {v(vCD[q & 1])}, {s(S_CT, 4)}, {s(sT3)} offen lds'])
            for ks in range(4):
                al[ks] = []
                for th in range(2):
                    off = (ks >> 1) * 4096 + (ks & 1) * 1024 + th * 65536
                    r = (n % 3) * 32 + (ks * 2 + th) * 4
                    al[ks].append([f's_add_u32 {s(sA1)}, {s(sAO)}, {off}',
                                   f'buffer_load_dwordx4 {a(r, 4)}, {v(vL16)}, {s(S_WS, 4)}, {s(sA1)} offen'])
        else:
            setup.append(f's_add_u32 {s(sT0)}, {s(sROTF)}, {n - 4}')
            setup.append(f's_sub_u32 {s(sT1)}, {s(sT0)}, 7')
            setup.append(f's_cmp_ge_u32 {s(sT0)}, 7')
            setup.append(f's_cselect_b32 {s(sT0)}, {s(sT1)}, {s(sT0)}')
            setup.append(f's_mul_i32 {s(sT1)}, {s(sW_)}, 7')
            setup.append(f's_add_u32 {s(sT0)}, {s(sT0)}, {s(sT1)}')
            setup.append(f's_lshl_b32 {s(sBO)}, {s(sT0)}, 16')
            setup.append(f's_lshl_b32 {s(sT2)}, {s(sCT)}, 7')
            setup.append(f's_add_u32 {s(sBO)}, {s(sBO)}, {s(sT2)}')
            setup.append(f's_lshl_b32 {s(sAO)}, {s(sT0)}, 12')
            setup.append(f's_add_u32 {s(sAO)}, {s(sAO)}, {s(sAB)}')
            for q in range(8):
                bd.append([f's_add_u32 m0, {s(sRING)}, {slot + 1024 * q}',
                           f's_add_u32 {s(sT3)}, {s(sBO)}, {8192 * q}',
                           f'buffer_load_dwordx4 {v(vFD)}, {s(S_WD, 4)}, {s(sT3)} offen lds'])
            for ks in range(4):
                al[ks] = []
                for th in range(2):
                    off = ks * 1024 + th * 112 * 1024
                    r = (n % 3) * 32 + (ks * 2 + th) * 4
                    al[ks].append([f's_add_u32 {s(sA1)}, {s(sAO)}, {off}',
                                   f'buffer_load_dwordx4 {a(r, 4)}, {v(vL16)}, {s(S_WS, 4)}, {s(sA1)} offen'])
        return setup, bd, al, tag

    def issue_stage(n):
        setup, bd, al, tag = stage_parts(n)
        for x in setup: p(x)
        for grp in bd:
            for x in grp: p(x, tag=tag)
        for ks in range(4):
            for grp in al[ks]:
                for x in grp: p(x)

    for n in range(3):
        issue_stage(n)

    p(f'v_lshrrev_b32 {v(t)}, 4, {v(vL)}')
    p(f'v_and_b32 {v(t + 1)}, 15, {v(vL)}')
    p(f's_lshl_b32 {s(sT0)}, {s(sRT)}, 6')
    p(f's_lshl_b32 {s(sT1)}, {s(sW_)}, 4')
    p(f's_add_u32 {s(sT0)}, {s(sT0)}, {s(sT1)}')
    p(f'v_add_u32 {v(t + 2)}, {s(sT0)}, {v(t)}')
    p(f's_lshl_b32 {s(sT1)}, {s(sCT)}, 7')
    p(f'v_lshlrev_b32 {v(t + 3)}, 3, {v(t + 1)}')
    p(f'v_add_u32 {v(t + 3)}, {s(sT1)}, {v(t + 3)}')
    p(f'v_lshl_add_u32 {v(t + 4)}, {v(t + 2)}, 10, {v(t + 3)}')
    p(f'v_lshlrev_b32 {v(vOO)}, 1, {v(t + 4)}')
    p(f'v_lshlrev_b32 {v(t + 5)}, 3, {v(t + 2)}')
    p(f'v_add_u32 {v(t + 5)}, {hex(WS_STATS)}, {v(t + 5)}')
    p(f'global_load_dwordx2 {v(DK, 2)}, {v(t + 3)}, {s(P_DSK, 2)}')
    for it in range(4):
        p(f's_mov_b32 {s(sT2)}, {it * 4096}')
        p(f'buffer_load_dwordx2 {v(XR + 2 * it, 2)}, {v(t + 4)}, {s(S_X, 4)}, {s(sT2)} offen')
        p(f'buffer_load_dwordx2 {v(ST + 2 * it, 2)}, {v(t + 5)}, {s(S_WS, 4)}, 0 offen offset:{it * 32}')

    p(f'v_lshrrev_b32 {v(t + 6)}, 4, {v(vL)}')
    p(f'v_and_b32 {v(t + 7)}, 1, {v(t + 6)}')
    p(f'v_lshrrev_b32 {v(t + 8)}, 1, {v(t + 6)}')
    p(f'v_bfe_u32 {v(t + 9)}, {v(vL)}, 2, 2')
    p(f'v_and_b32 {v(t + 10)}, 3, {v(vL)}')
    p(f'v_lshl_add_u32 {v(t + 11)}, {v(t + 8)}, 3, {v(t + 9)}')
    p(f'v_lshlrev_b32 {v(t + 11)}, 7, {v(t + 11)}')
    p(f'v_lshrrev_b32 {v(t + 12)}, 1, {v(t + 10)}')
    p(f'v_lshl_add_u32 {v(t + 12)}, {v(t + 7)}, 1, {v(t + 12)}')
    p(f'v_bfe_u32 {v(t + 13)}, {v(t + 9)}, 1, 1')
    p(f'v_lshl_add_u32 {v(t + 12)}, {v(t + 13)}, 2, {v(t + 12)}')
    p(f'v_lshl_add_u32 {v(t + 11)}, {v(t + 12)}, 4, {v(t + 11)}')
    p(f'v_and_b32 {v(t + 13)}, 1, {v(t + 10)}')
    p(f'v_lshl_add_u32 {v(t + 11)}, {v(t + 13)}, 3, {v(t + 11)}')
    p(f'v_add_u32 {v(vFR[0])}, {s(sRING)}, {v(t + 11)}')
    p(f'v_xor_b32 {v(t + 11)}, 64, {v(t + 11)}')
    p(f'v_add_u32 {v(vFR[1])}, {s(sRING)}, {v(t + 11)}')
    p(f'v_and_b32 {v(t + 6)}, 31, {v(vL)}')
    p(f'v_lshrrev_b32 {v(t + 7)}, 5, {v(vL)}')
    p(f'v_bfe_u32 {v(t + 8)}, {v(t + 6)}, 1, 3')
    p(f'v_xor_b32 {v(t + 8)}, {v(t + 8)}, {v(t + 7)}')
    p(f'v_lshlrev_b32 {v(t + 9)}, 7, {v(t + 6)}')
    for ks in range(4):
        p(f'v_xor_b32 {v(t + 10)}, {2 * ks}, {v(t + 8)}')
        p(f'v_lshl_add_u32 {v(t + 10)}, {v(t + 10)}, 4, {v(t + 9)}')
        p(f'v_add_u32 {v(vCR[ks])}, {s(sRING)}, {v(t + 10)}')
    p(f'v_bfe_u32 {v(t + 9)}, {v(t + 6)}, 2, 1')
    p(f'v_lshlrev_b32 {v(t + 9)}, 4, {v(t + 9)}')
    p(f'v_lshrrev_b32 {v(t + 10)}, 3, {v(t + 6)}')
    p(f'v_lshl_add_u32 {v(t + 9)}, {v(t + 10)}, 2, {v(t + 9)}')
    p(f'v_and_b32 {v(t + 10)}, 3, {v(t + 6)}')
    p(f'v_add_u32 {v(t + 9)}, {v(t + 9)}, {v(t + 10)}')
    p(f'v_lshlrev_b32 {v(t + 9)}, 8, {v(t + 9)}')
    p(f'v_and_b32 {v(t + 10)}, 7, {v(t + 6)}')
    p(f'v_xor_b32 {v(t + 10)}, {v(t + 10)}, {v(t + 7)}')
    p(f's_lshl_b32 {s(sT0)}, {s(sW_)}, 14')
    p(f'v_add_u32 {v(t + 9)}, {s(sT0)}, {v(t + 9)}')
    for q4 in range(4):
        p(f'v_xor_b32 {v(t + 11)}, {2 * q4}, {v(t + 10)}')
        p(f'v_lshl_add_u32 {v(vPW[q4])}, {v(t + 11)}, 4, {v(t + 9)}')
    p(f's_and_b32 {s(sT0)}, {s(sW_)}, 1')
    p(f's_lshl_b32 {s(sT0)}, {s(sT0)}, 2')
    p(f'v_add_u32 {v(t + 9)}, {s(sT0)}, {v(t)}')
    p(f'v_xor_b32 {v(t + 9)}, {v(t + 9)}, {v(t + 1)}')
    p(f's_lshl_b32 {s(sT0)}, {s(sW_)}, 12')
    p(f'v_lshl_add_u32 {v(t + 10)}, {v(t)}, 8, {s(sT0)}')
    p(f'v_lshl_add_u32 {v(vRD[0])}, {v(t + 9)}, 4, {v(t + 10)}')
    p(f'v_add_u32 {v(vRD[1])}, {hex(RINGB)}, {v(vRD[0])}')
    p(f'v_add_u32 {v(vRD[2])}, {hex(RINGB + 3 * 24576)}, {v(vRD[0])}')

    def skip_term():
        L = []
        L.append(f'v_lshlrev_b32 {v(DK + 2)}, 16, {v(DK)}')
        L.append(f'v_and_b32 {v(DK + 3)}, 0xffff0000, {v(DK)}')
        L.append(f'v_lshlrev_b32 {v(DK + 4)}, 16, {v(DK + 1)}')
        L.append(f'v_and_b32 {v(DK + 5)}, 0xffff0000, {v(DK + 1)}')
        for it in range(4):
            m = ST + 2 * it; rs = m + 1
            for h in range(2):
                x0 = XF + 4 * it + 2 * h; x1 = x0 + 1
                k0 = SK + 4 * it + 2 * h; k1 = k0 + 1
                L.append(f'v_lshlrev_b32 {v(x0)}, 16, {v(XR + 2 * it + h)}')
                L.append(f'v_and_b32 {v(x1)}, 0xffff0000, {v(XR + 2 * it + h)}')
                L.append(f'v_sub_f32 {v(k0)}, {v(x0)}, {v(m)}')
                L.append(f'v_sub_f32 {v(k1)}, {v(x1)}, {v(m)}')
                L.append(f'v_cvt_pk_bf16_f32 {v(T)}, {v(k0)}, {v(k1)}')
                L.append(f'v_lshlrev_b32 {v(k0)}, 16, {v(T)}')
                L.append(f'v_and_b32 {v(k1)}, 0xffff0000, {v(T)}')
                L.append(f'v_mul_f32 {v(k0)}, {v(k0)}, {v(rs)}')
                L.append(f'v_mul_f32 {v(k1)}, {v(k1)}, {v(rs)}')
                L.append(f'v_cvt_pk_bf16_f32 {v(T)}, {v(k0)}, {v(k1)}')
                L.append(f'v_lshlrev_b32 {v(k0)}, 16, {v(T)}')
                L.append(f'v_and_b32 {v(k1)}, 0xffff0000, {v(T)}')
                L.append(f'v_mul_f32 {v(k0)}, {v(k0)}, {v(DK + 2 + 2 * h)}')
                L.append(f'v_mul_f32 {v(k1)}, {v(k1)}, {v(DK + 3 + 2 * h)}')
                L.append(f'v_cvt_pk_bf16_f32 {v(T)}, {v(k0)}, {v(k1)}')
                L.append(f'v_lshlrev_b32 {v(k0)}, 16, {v(T)}')
                L.append(f'v_and_b32 {v(k1)}, 0xffff0000, {v(T)}')
        return deque(L)
    side = skip_term()

    frs = [(n, ks, dh) for n in range(11) for ks in range(4) for dh in range(2)]

    def read_frag(idx):
        n, ks, dh = frs[idx]
        r = WR + 4 * (idx % 4)
        slot = (n % 3) * 8192
        if ks == 0 and dh == 0:
            p.wait_vm_tag(f'S{n}')
        if n < 4:
            p(f'ds_read_b128 {v(r, 4)}, {v(vCR[ks])} offset:{slot + 4096 * dh}')
        else:
            p(f'ds_read_b64_tr_b16 {v(r, 2)}, {v(vFR[dh])} offset:{slot + 2048 * ks}')
            p(f'ds_read_b64_tr_b16 {v(r + 2, 2)}, {v(vFR[dh])} offset:{slot + 2048 * ks + 512}')

    PD = 2
    for q in range(PD):
        read_frag(q)
    nxt = None
    for idx, (n, ks, dh) in enumerate(frs):
        r = WR + 4 * (idx % 4)
        if ks == 0 and dh == 0:
            stamp()
            nxt = stage_parts(n + 3) if n + 3 < 11 else None
            if nxt:
                setup_done = False
        for th in range(2):
            acc = v(ACC + 32 * dh + 16 * th, 16)
            bfr = a((n % 3) * 32 + (ks * 2 + th) * 4, 4)
            first = (ks == 0 and n in (0, 4))
            p(f'v_mfma_f32_32x32x16_bf16 {acc}, {v(r, 4)}, {bfr}, {"0" if first else acc}')
            if th == 0 and idx + PD < len(frs):
                read_frag(idx + PD)
            for _ in range(3):
                if side: p(side.popleft())
        if nxt:
            setup, bd, al, tag = nxt
            if dh == 1:
                if not setup_done:
                    for x in setup: p(x)
                    setup_done = True
                for grp in al[ks]:
                    for x in grp: p(x)
            if ks == 3 and dh == 1:
                for grp in bd:
                    for x in grp: p(x, tag=tag)
        if n == 3 and ks == 3 and dh == 1:
            for dd in range(2):
                for th in range(2):
                    for q4 in range(4):
                        reg = ACC + 32 * dd + 16 * th + 4 * q4
                        p(f'ds_write_b128 {v(vPW[q4])}, {v(reg, 4)} offset:{th * 8192 + dd * 128}')
    while side:
        p(side.popleft())
    stamp()
    p(f's_lshl_b32 {s(sT0)}, {s(sW_)}, 13')
    p(f's_add_u32 {s(sT0)}, {s(sT0)}, {RINGB}')
    for q4 in range(4):
        p(f'v_add_u32 {v(vPW[q4])}, {s(sT0)}, {v(vPW[q4])}')
    for dd in range(2):
        for th in range(2):
            for q4 in range(4):
                reg = ACC + 32 * dd + 16 * th + 4 * q4
                p(f'ds_write_b128 {v(vPW[q4])}, {v(reg, 4)} offset:{th * 8192 + dd * 128}')
    p.wait_lgkm_all()
    p('s_barrier')
    stamp()
    for it in range(4):
        Y = R2; F = R2 + 16
        for w in range(4):
            p(f'ds_read_b128 {v(Y + 4 * w, 4)}, {v(vRD[0])} offset:{w * 16384 + it * 1024}')
        for w in range(4):
            base = vRD[1] if w < 3 else vRD[2]
            off = (w * 24576 if w < 3 else 0) + it * 1024
            p(f'ds_read_b128 {v(F + 4 * w, 4)}, {v(base)} offset:{off}')
        for e in range(4):
            p(f'v_add_f32 {v(F + e)}, {v(F + e)}, {v(F + 4 + e)}')
            p(f'v_add_f32 {v(F + 8 + e)}, {v(F + 8 + e)}, {v(F + 12 + e)}')
        for e in range(4):
            p(f'v_add_f32 {v(F + e)}, {v(F + e)}, {v(F + 8 + e)}')
        for h in range(2):
            p(f'v_cvt_pk_bf16_f32 {v(T + h)}, {v(F + 2 * h)}, {v(F + 2 * h + 1)}')
        for h in range(2):
            p(f'v_lshlrev_b32 {v(F + 2 * h)}, 16, {v(T + h)}')
            p(f'v_and_b32 {v(F + 2 * h + 1)}, 0xffff0000, {v(T + h)}')
        for e in range(4):
            p(f'v_mul_f32 {v(F + 4 + e)}, {f2h(-LOG2E)}, {v(F + e)}')
        for e in range(4):
            p(f'v_exp_f32 {v(F + 4 + e)}, {v(F + 4 + e)}')
        for e in range(4):
            p(f'v_add_f32 {v(Y + e)}, {v(Y + e)}, {v(Y + 4 + e)}')
            p(f'v_add_f32 {v(Y + 8 + e)}, {v(Y + 8 + e)}, {v(Y + 12 + e)}')
        for e in range(4):
            p(f'v_add_f32 {v(F + 4 + e)}, 1.0, {v(F + 4 + e)}')
        for e in range(4):
            p(f'v_rcp_f32 {v(F + 4 + e)}, {v(F + 4 + e)}')
        for e in range(4):
            p(f'v_add_f32 {v(Y + e)}, {v(Y + e)}, {v(Y + 8 + e)}')
        for e in range(4):
            p(f'v_add_f32 {v(Y + e)}, {v(Y + e)}, {v(SK + 4 * it + e)}')
        for e in range(4):
            p(f'v_mul_f32 {v(F + e)}, {v(F + e)}, {v(F + 4 + e)}')
        for h in range(2):
            p(f'v_cvt_pk_bf16_f32 {v(T + h)}, {v(F + 2 * h)}, {v(F + 2 * h + 1)}')
        for h in range(2):
            p(f'v_lshlrev_b32 {v(F + 2 * h)}, 16, {v(T + h)}')
            p(f'v_and_b32 {v(F + 2 * h + 1)}, 0xffff0000, {v(T + h)}')
        o = T + 4 + 4 * (it & 1)
        for e in range(4):
            p(f'v_fma_f32 {v(o + e)}, {v(Y + e)}, {v(F + e)}, {v(XF + 4 * it + e)}')
        p(f's_mov_b32 {s(sT2)}, {it * 8192}')
        p(f'buffer_store_dwordx4 {v(o, 4)}, {v(vOO)}, {s(S_OUT, 4)}, {s(sT2)} offen')
    stamp()
    p('s_endpgm')
    p.label('K2_DONE')
    p('s_endpgm')
    lines = p.finalize(verbose=True)
    return lines
```

```python
import re

TRANS = ('v_exp_f32', 'v_log_f32', 'v_rcp_f32', 'v_rsq_f32', 'v_sqrt_f32', 'v_sin_f32', 'v_cos_f32', 'v_rcp_iflag_f32')
MFMA_PASSES = {
    'v_mfma_f32_32x32x16_bf16': 8,
    'v_mfma_f32_16x16x32_bf16': 4,
    'v_mfma_f32_4x4x4bf16_1k': 2,
    'v_mfma_f32_4x4x4_16b_bf16': 2,
}

_reg_re = re.compile(r'^(-?)(?:abs\()?\|?([vas])(\d+)\)?\|?$')
_rng_re = re.compile(r'^(-?)([vas])\[(\d+):(\d+)\]$')


def regs_of(op):
    op = op.strip()
    m = _rng_re.match(op)
    if m:
        return [(m.group(2), i) for i in range(int(m.group(3)), int(m.group(4)) + 1)]
    m = _reg_re.match(op)
    if m:
        return [(m.group(2), int(m.group(3)))]
    if op == 'vcc':
        return [('x', 'vcc')]
    if op == 'exec':
        return [('x', 'exec')]
    if op == 'm0':
        return [('x', 'm0')]
    return []


class Ins:
    __slots__ = ('text', 'mn', 'ops', 'mods', 'reads', 'writes', 'cls', 'passes', 'creads', 'tag', 'is_lds_dma', 'wide_store', 'comment', 'opt')

    def __init__(self, text, tag=None):
        self.text = text
        self.tag = tag
        self.opt = False
        self.mods = []
        t = text.split(';')[0].strip()
        self.comment = None
        if t.endswith(':') or t.startswith('.') or not t:
            self.cls = 'label' if t.endswith(':') else 'dir'
            self.mn = t
            self.ops = []
            self.reads = set(); self.writes = set(); self.creads = set()
            self.passes = 0; self.is_lds_dma = False; self.wide_store = False
            return
        parts = t.split(None, 1)
        mn = parts[0]
        self.mn = mn
        rest = parts[1] if len(parts) > 1 else ''
        ops = []; depth = 0; cur = ''
        for ch in rest:
            if ch in '[(':
                depth += 1
            if ch in '])':
                depth -= 1
            if ch == ',' and depth == 0:
                ops.append(cur.strip()); cur = ''
            else:
                cur += ch
        if cur.strip():
            ops.append(cur.strip())
        mods = []
        if ops:
            last = ops[-1].split()
            ops[-1] = last[0]
            mods = last[1:]
        self.ops = ops
        self.mods = mods
        base = re.sub(r'_(e32|e64|dpp|sdwa)$', '', mn)
        R = set(); W = set(); C = set()
        self.passes = 0; self.is_lds_dma = False; self.wide_store = False

        def rd(i):
            if i < len(ops):
                R.update(regs_of(ops[i]))

        def wr(i):
            if i < len(ops):
                W.update(regs_of(ops[i]))

        if base.startswith('v_mfma'):
            self.cls = 'mfma'
            self.passes = MFMA_PASSES[base]
            wr(0); rd(1); rd(2); rd(3)
            C.update(regs_of(ops[3]))
        elif base.startswith('v_'):
            self.cls = 'valu'
            if base.startswith('v_cmp'):
                wr(0)
                for i in range(1, len(ops)): rd(i)
            elif base in ('v_permlane32_swap_b32', 'v_permlane16_swap_b32'):
                wr(0); wr(1); rd(0); rd(1)
            elif base in ('v_add_co_u32', 'v_sub_co_u32'):
                wr(0); wr(1); rd(2); rd(3)
            elif base in ('v_addc_co_u32', 'v_subb_co_u32'):
                wr(0); wr(1); rd(2); rd(3); rd(4)
            else:
                wr(0)
                for i in range(1, len(ops)): rd(i)
                if base in ('v_fmac_f32', 'v_dot2c_f32_bf16', 'v_pk_fmac_f16', 'v_writelane_b32'):
                    rd(0)
                if base == 'v_cndmask_b32' and len(ops) == 3:
                    R.add(('x', 'vcc'))
                if 'dpp' in mn or any(m.startswith(('row_', 'quad_perm', 'wave_')) for m in mods):
                    rd(0)
            R.add(('x', 'exec'))
        elif base.startswith('ds_'):
            self.cls = 'ds'
            if base.startswith('ds_read') or base.startswith('ds_bpermute') or base.startswith('ds_swizzle'):
                wr(0)
                for i in range(1, len(ops)): rd(i)
            else:
                for i in range(len(ops)): rd(i)
        elif base.startswith('buffer_') or base.startswith('global_'):
            self.cls = 'vmem'
            if base in ('buffer_wbl2', 'buffer_inv'):
                pass
            elif 'lds' in mods or base.startswith('global_load_lds'):
                self.is_lds_dma = True
                for i in range(len(ops)): rd(i)
                R.add(('x', 'm0'))
            elif '_load' in base:
                wr(0)
                for i in range(1, len(ops)): rd(i)
            elif 'atomic' in base:
                if 'sc0' in mods:
                    wr(0)
                    for i in range(1, len(ops)): rd(i)
                else:
                    for i in range(len(ops)): rd(i)
            else:
                for i in range(len(ops)): rd(i)
                if base.endswith('x4') or base.endswith('x3'):
                    self.wide_store = True
        elif base.startswith('s_'):
            if base in ('s_waitcnt', 's_nop', 's_barrier', 's_endpgm', 's_setprio', 's_sleep', 's_branch') or base.startswith('s_cbranch'):
                self.cls = 'sopp'
                if base in ('s_cbranch_vccz', 's_cbranch_vccnz'):
                    R.add(('x', 'vcc'))
                if base in ('s_cbranch_execz', 's_cbranch_execnz'):
                    R.add(('x', 'exec'))
            elif base.startswith('s_load') or base in ('s_memtime', 's_memrealtime'):
                self.cls = 'smem'
                wr(0)
                for i in range(1, len(ops)): rd(i)
            elif base.startswith('s_cmp') or base.startswith('s_bitcmp'):
                self.cls = 'salu'
                for i in range(len(ops)): rd(i)
            elif base in ('s_setpc_b64',):
                self.cls = 'salu'
                rd(0)
            else:
                self.cls = 'salu'
                wr(0)
                for i in range(1, len(ops)): rd(i)
                if 'saveexec' in base:
                    W.add(('x', 'exec')); R.add(('x', 'exec'))
                if base in ('s_addk_i32', 's_mulk_i32'):
                    rd(0)
        else:
            raise ValueError('cannot parse: ' + text)
        self.reads = R; self.writes = W; self.creads = C


def _is_v(r):
    return r[0] in ('v', 'a')


class Prog:
    def __init__(self):
        self.ins = []

    def I(self, text, tag=None, opt=False):
        for line in text.split('\n'):
            line = line.strip()
            if line:
                i = Ins(line, tag)
                i.opt = opt
                self.ins.append(i)
        return self

    __call__ = I

    def label(self, name):
        self.ins.append(Ins(name + ':'))

    def wait_vm_tag(self, tag):
        i = Ins('s_nop 0'); i.cls = 'waittag'; i.tag = ('vm', tag); self.ins.append(i)

    def wait_lgkm_all(self):
        i = Ins('s_nop 0'); i.cls = 'waittag'; i.tag = ('lgkm', None); self.ins.append(i)

    def sync_point(self):
        i = Ins('s_nop 0'); i.cls = 'waittag'; i.tag = ('all', None); self.ins.append(i)

    def finalize(self, verbose=False):
        out = []
        vm = []
        lg = []
        smem_out = False
        stats = {'nops': 0, 'nop_states': 0, 'waits': 0}

        def emit(text):
            i = Ins(text); out.append(i); return i

        def do_wait(vmk=None, lgk=None, all_lg=False):
            nonlocal vm, lg, smem_out
            parts = []
            if vmk is not None and vmk >= 0 and vmk < len(vm):
                rest = vm[vmk + 1:]
                n = sum(1 for o in rest if not o.opt)
                n = min(n, 63)
                parts.append(f'vmcnt({n})')
                vm = rest
            if all_lg:
                if lg or smem_out:
                    parts.append('lgkmcnt(0)')
                    lg = []; smem_out = False
            elif lgk is not None and lgk >= 0 and lgk < len(lg):
                rest = lg[lgk + 1:]
                n = sum(1 for o in rest if not o.opt)
                if smem_out:
                    n = 0; rest = []; smem_out = False
                n = min(n, 15)
                parts.append(f'lgkmcnt({n})')
                lg = rest
            if parts:
                emit('s_waitcnt ' + ' '.join(parts))
                stats['waits'] += 1

        smem_regs = set()

        for ins in self.ins:
            if ins.cls == 'waittag':
                kind, tag = ins.tag
                if kind == 'vm':
                    idx = -1
                    for k, o in enumerate(vm):
                        if o.tag == tag:
                            idx = k
                    if idx >= 0:
                        do_wait(vmk=idx)
                elif kind == 'lgkm':
                    do_wait(all_lg=True)
                else:
                    do_wait(vmk=len(vm) - 1, all_lg=True)
                continue
            if ins.cls in ('label', 'dir'):
                out.append(ins)
                continue
            if ins.mn == 's_waitcnt':
                t = ins.text
                m = re.search(r'vmcnt\((\d+)\)', t)
                if m:
                    n = int(m.group(1)); vm = vm[len(vm) - n:] if (n > 0 and len(vm) > n) else (vm if n > 0 else [])
                m = re.search(r'lgkmcnt\((\d+)\)', t)
                if m:
                    n = int(m.group(1)); lg = lg[len(lg) - n:] if (n > 0 and len(lg) > n) else (lg if n > 0 else [])
                    if n == 0:
                        smem_out = False; smem_regs = set()
                out.append(ins)
                continue
            touched = ins.reads | ins.writes
            vneed = None
            for k, o in enumerate(vm):
                if o.writes and (o.writes & touched):
                    vneed = k
            lneed = None
            for k, o in enumerate(lg):
                if o.writes and (o.writes & touched):
                    lneed = k
            sm = smem_out and bool(smem_regs & touched)
            if vneed is not None or lneed is not None or sm:
                do_wait(vmk=vneed, lgk=lneed, all_lg=sm)
                if not smem_out:
                    smem_regs = set()
            if ins.cls == 'vmem' and len(vm) >= 63:
                do_wait(vmk=len(vm) - 63)
            need = self._need_states(ins, out)
            if need > 0:
                stats['nops'] += 1; stats['nop_states'] += need
                while need > 0:
                    k = min(need, 16)
                    emit(f's_nop {k - 1}')
                    need -= k
            out.append(ins)
            if ins.cls == 'vmem':
                vm.append(ins)
            elif ins.cls == 'ds':
                lg.append(ins)
            elif ins.cls == 'smem':
                smem_out = True
                smem_regs |= ins.writes
        if verbose:
            print('finalize:', stats, 'instructions:', sum(1 for o in out if o.cls not in ('label', 'dir')))
        self.out = out
        self.stats = stats
        return [o.text for o in out]

    @staticmethod
    def _states(o):
        if o.mn == 's_nop':
            return int(o.ops[0]) + 1
        return 1

    def _need_states(self, ins, out):
        need = 0
        dist = 0
        R = ins.reads; W = ins.writes
        vR = {r for r in R if _is_v(r)}
        vW = {r for r in W if _is_v(r)}
        sR = {r for r in R if r[0] == 's' or r == ('x', 'vcc')}
        for o in reversed(out):
            if o.cls in ('label', 'dir'):
                continue
            if dist >= 24:
                break
            req = 0
            if o.cls == 'valu':
                ow = o.writes
                owv = {r for r in ow if _is_v(r)}
                ows = {r for r in ow if r[0] == 's' or r == ('x', 'vcc')}
                if ins.cls == 'mfma' and (owv & vR):
                    req = max(req, 2)
                if ins.cls == 'valu':
                    b = re.sub(r'_(e32|e64)$', '', o.mn)
                    if b in TRANS and (owv & vR):
                        req = max(req, 1)
                    if owv & vR:
                        if ins.mn.startswith(('v_readfirstlane', 'v_readlane')):
                            req = max(req, 1)
                        if ins.mn.startswith('v_permlane') or 'dpp' in ins.mn or any(m.startswith(('row_', 'quad_perm')) for m in ins.mods):
                            req = max(req, 2)
                    if ows & sR:
                        req = max(req, 4 if ins.mn.startswith(('v_readlane', 'v_writelane')) else 2)
                    if 'sdwa' in o.mn and (owv & vR):
                        req = max(req, 1)
                if ins.cls == 'vmem' and (ows & {r for r in R if r[0] == 's'}):
                    req = max(req, 5)
                if ins.cls in ('salu', 'sopp', 'smem') and (ows & (sR | R)):
                    req = max(req, 4)
            elif o.cls == 'mfma':
                D = o.writes; p = o.passes
                if ins.cls == 'mfma':
                    if D & ins.creads:
                        if D == ins.creads and ins.passes == p:
                            req = max(req, 2 if p == 2 else 0)
                        else:
                            req = max(req, {2: 4, 4: 6, 8: 10}[p])
                    ab = set()
                    for k in (1, 2):
                        ab.update(regs_of(ins.ops[k]))
                    if D & ab:
                        req = max(req, {2: 5, 4: 8, 8: 12}[p])
                    if (D & ins.writes) and not (D & ins.creads):
                        req = max(req, {2: 5, 4: 8, 8: 12}[p])
                elif ins.cls in ('valu', 'vmem', 'ds'):
                    if D & (vR | vW):
                        req = max(req, {2: 5, 4: 8, 8: 12}[p])
                    if ins.cls == 'valu' and (o.creads & vW):
                        req = max(req, {2: 1, 4: 3, 8: 7}[p])
                    if ins.cls in ('vmem', 'ds') and (o.creads & vW):
                        req = max(req, {2: 1, 4: 3, 8: 7}[p])
            elif o.cls == 'salu':
                if ('x', 'm0') in o.writes and ins.cls == 'vmem' and ins.is_lds_dma:
                    req = max(req, 1)
                if ('x', 'exec') in o.writes and ins.cls == 'mfma':
                    req = max(req, 4)
            elif o.cls == 'vmem':
                if o.wide_store and ins.cls in ('valu', 'mfma', 'ds', 'vmem'):
                    data = set(regs_of(o.ops[0])) if o.mn.startswith('buffer') else set(regs_of(o.ops[1]))
                    if data & vW:
                        req = max(req, 2)
            if req > dist:
                need = max(need, req - dist)
            dist += self._states(o)
        return need


def align_fix(lines):
    return lines


KD = '''
.section .rodata,"a"
.p2align 6
.amdhsa_kernel {name}
  .amdhsa_next_free_vgpr {nv}
  .amdhsa_next_free_sgpr {ns}
  .amdhsa_accum_offset {acc}
  .amdhsa_group_segment_fixed_size 0
  .amdhsa_kernarg_size 128
  .amdhsa_user_sgpr_count 2
  .amdhsa_user_sgpr_kernarg_segment_ptr 1
  .amdhsa_system_sgpr_workgroup_id_x 1
  .amdhsa_float_denorm_mode_32 3
.end_amdhsa_kernel
.text
'''


def kernel_text(name, lines, nv=512, ns=102, acc=256):
    s = f'.text\n.globl {name}\n.p2align 8\n.type {name},@function\n{name}:\n'
    for l in lines:
        if l.endswith(':') and ' ' not in l:
            s += l + '\n'
        else:
            s += '  ' + l + '\n'
    s += KD.format(name=name, nv=nv, ns=ns, acc=acc)
    return s
```

```python
import sys, os
sys.path.insert(0, 'gen')
import importlib, kf, k1, k2

HEADER = open('recurrent_scan__ssm_conv_s5__swiglu_ffn__prompt.s.ref').read().split('; Override launch geometry')[0]

def make(path, prof=False, opts=None, extra_launch=''):
    opts = opts or {}
    l1 = k1.build(prof=prof, opts=opts.get('k1'))
    l2 = k2.build(prof=prof, opts=opts.get('k2'))
    txt = HEADER
    txt += '; Two launches: s5_in_kernel (LayerNorm statistics, SSM input GEMM + scan, gate/up GEMM + SwiGLU)\n'
    txt += ';               s5_out_kernel (state->output GEMM, down GEMM, final combine)\n'
    txt += f'; @launch kernel=s5_in_kernel grid=(256,1,1) block=(256,1,1) lds={k1.LDS_K1}\n'
    txt += f'; @launch kernel=s5_out_kernel grid=(256,1,1) block=(256,1,1) lds={k2.LDS_K2}\n'
    txt += extra_launch
    txt += '.amdgcn_target "amdgcn-amd-amdhsa--gfx950"\n'
    txt += kf.kernel_text('s5_in_kernel', l1)
    txt += kf.kernel_text('s5_out_kernel', l2)
    open(path, 'w').write(txt)
    return txt

if __name__ == '__main__':
    out = sys.argv[1] if len(sys.argv) > 1 else 'recurrent_scan__ssm_conv_s5__swiglu_ffn__prompt.s'
    make(out, prof=('prof' in sys.argv))
    print('wrote', out, os.path.getsize(out))
```
